```python
import torch

def _softmax(x, axis=-1):
    return torch.softmax(x, dim=axis)
def _gelu(x):
    return torch.nn.functional.gelu(x, approximate="tanh")
def _silu(x):
    return torch.nn.functional.silu(x)
def _sigmoid(x):
    return torch.sigmoid(x)
def _layernorm(x, axis=-1, eps=1e-5):
    m = x.mean(dim=axis, keepdim=True)
    v = x.var(dim=axis, keepdim=True, unbiased=False)
    return (x - m) / torch.sqrt(v + eps)
def _scatter_add(tgt, idx, src, axis=0):
    return tgt.clone().index_add_(axis, idx, src)
def _segment_sum(src, seg, n):
    out = torch.zeros((n,) + src.shape[1:], dtype=src.dtype)
    return out.index_add_(0, seg, src)
def _pad(x, pw):
    flat = tuple(v for pair in reversed(pw) for v in pair)
    return torch.nn.functional.pad(x, flat)

kernel_name = 'sequential_preLN__softmax_full_mha__moe_arch_mod__prompt'

def setup_inputs():

    _w = (lambda a: (lambda t: t.to(torch.bfloat16) if t.is_floating_point() else t)(torch.as_tensor(a)))
    def _A_setup():
        B, S, D = 1, 2048, 512
        return {
            "x": _w((lambda *s: torch.randn(*s, dtype=torch.bfloat16) * 0.05)(B, S, D)),
            "wqkv": _w((lambda *s: torch.randn(*s, dtype=torch.bfloat16) * 0.05)(D, 3 * D)),
            "wo": _w((lambda *s: torch.randn(*s, dtype=torch.bfloat16) * 0.05)(D, D)),
        }
    _A_in = _A_setup()

    def _B_setup():
        B, S, D, F, C = 1, 2048, 512, 1792, 2
        return {
            "x": _w((lambda *s: torch.randn(*s, dtype=torch.bfloat16) * 0.05)(B, S, D)),
            "w_r": _w((lambda *s: torch.randn(*s, dtype=torch.bfloat16) * 0.05)(D)),
            "w_gate": _w((lambda *s: torch.randn(*s, dtype=torch.bfloat16) * 0.05)(D, F)),
            "w_up": _w((lambda *s: torch.randn(*s, dtype=torch.bfloat16) * 0.05)(D, F)),
            "w_down": _w((lambda *s: torch.randn(*s, dtype=torch.bfloat16) * 0.05)(F, D)),
        }
    _B_in = _B_setup()

    return {
        "A_x": _A_in["x"],
        "A_wqkv": _A_in["wqkv"],
        "A_wo": _A_in["wo"],
        "B_x": _B_in["x"],
        "B_w_r": _B_in["w_r"],
        "B_w_gate": _B_in["w_gate"],
        "B_w_up": _B_in["w_up"],
        "B_w_down": _B_in["w_down"],
    }

def reference(A_x, A_wqkv, A_wo, B_x, B_w_r, B_w_gate, B_w_up, B_w_down):
    def _A_ref(x, wqkv, wo):
        B, S, D = x.shape
        H = 32; Dh = D // H
        qkv = (lambda x, *d: x.permute(*d))((x @ wqkv).reshape(B, S, 3, H, Dh), 2, 0, 3, 1, 4)
        q, k, v = qkv[0], qkv[1], qkv[2]
        scale = Dh ** -0.5
        scores = torch.einsum("bhqd,bhkd->bhqk", q, k) * scale
        p = _softmax(scores, axis=-1)
        o = torch.einsum("bhqk,bhkd->bhqd", p, v)
        return (lambda x, *d: x.permute(*d))(o, 0, 2, 1, 3).reshape(B, S, D) @ wo

    def _B_ref(x, w_r, w_gate, w_up, w_down):
        B, S, D = x.shape
        C = 2
        r = x @ w_r
        idx = torch.argsort(-r, axis=-1)[:, :C]
        idx_e = (lambda x, n, axis: torch.repeat_interleave(x, n, dim=axis))(idx.reshape(B, C, 1), D, axis=2)
        x_sel = (lambda x, i, axis: torch.take_along_dim(x, i, dim=axis))(x, idx_e, axis=1)
        g = _silu(x_sel @ w_gate)
        u = x_sel @ w_up
        y = (g * u) @ w_down
        r_sel = _sigmoid((lambda x, i, axis: torch.take_along_dim(x, i, dim=axis))(r, idx, axis=1))
        y = y * r_sel.reshape(B, C, 1)
        b_off = (torch.arange(B) * S).reshape(B, 1)
        flat_idx = (idx + b_off).reshape(B * C)
        zero = (x * 0.0).reshape(B * S, D)
        upd = _scatter_add(zero, flat_idx, y.reshape(B * C, D), axis=0)
        return x + upd.reshape(B, S, D)

    x = A_x
    h = x + _A_ref(_layernorm(x, axis=-1), A_wqkv, A_wo)
    h2 = h + _B_ref(_layernorm(h, axis=-1), B_w_r, B_w_gate, B_w_up, B_w_down)
    return h2
```

```python
from gen import *

def row_ror_sum(a, regs):
    for sh in (8, 4, 2, 1):
        a.nop(2)
        for r in regs:
            a(f"v_add_f32_dpp v{r}, v{r}, v{r} row_ror:{sh} row_mask:0xf bank_mask:0xf")


def gen_k3(a):
    name = "k3_proj_kernel"
    kernel_head(a, name)
    a("s_cmp_ge_u32 s2, 128")
    a("s_cbranch_scc1 K3_END")
    a("s_load_dwordx2 s[4:5], s[0:1], 0")
    a("s_load_dwordx2 s[6:7], s[0:1], 16")
    a("s_load_dwordx2 s[8:9], s[0:1], 80")
    a("s_load_dwordx2 s[10:11], s[0:1], 64")
    a("s_load_dwordx2 s[44:45], s[0:1], 32")
    a("v_lshrrev_b32 v1, 6, v0")
    a("v_and_b32 v2, 63, v0")
    a.nop(1)
    a("v_readfirstlane_b32 s21, v1")
    a("v_and_b32 v3, 15, v2")
    a("v_lshrrev_b32 v4, 4, v2")
    a("s_waitcnt lgkmcnt(0)")
    a.srd(12, 4, 2048 * 512 * 2)
    a.srd(16, 6, 512 * 512 * 2)
    a.srd(24, 8, WS_SIZE)
    a.srd(28, 10, 2048 * 512 * 2)
    a.srd(48, 44, 1024)
    a("s_lshl_b32 s22, s2, 4")
    a("s_lshl_b32 s23, s21, 8")
    AF = 128
    BR = 192
    FR = 96
    ACC = 64
    XR = 40
    WR = 56
    a("v_lshlrev_b32 v5, 13, v4")
    a("v_lshl_add_u32 v5, v3, 4, v5")
    a("v_add_u32 v5, s23, v5")
    a("v_add_u32 v6, 0x1000, v5")

    def bload(s, buf):
        a(f"s_mov_b32 s34, {s*32768}")
        for r in range(8):
            base = 5 if r < 4 else 6
            a(f"buffer_load_dwordx4 {vr(BR+32*buf+4*r,4)}, v{base}, s[16:19], s34 offen offset:{(r&3)*1024}")
    bload(0, 0)
    a("v_add_u32 v7, s22, v3")
    a("v_lshlrev_b32 v7, 10, v7")
    a("v_lshl_add_u32 v7, v4, 4, v7")
    a(f"s_mov_b32 s35, 0x{WS_O:x}")
    for s in range(16):
        a(f"buffer_load_dwordx4 {vr(AF+4*s,4)}, v7, s[24:27], s35 offen offset:{64*s}")
    a("v_lshl_add_u32 v8, v4, 2, s22")
    a("v_lshlrev_b32 v8, 10, v8")
    a("v_lshl_add_u32 v8, v3, 4, v8")
    a("v_add_u32 v8, s23, v8")
    for i in range(4):
        a(f"buffer_load_dwordx4 {vr(XR+4*i,4)}, v8, s[12:15], 0 offen offset:{1024*i}")
    a("v_lshlrev_b32 v9, 4, v3")
    a("v_add_u32 v9, s23, v9")
    a(f"buffer_load_dwordx4 {vr(WR,4)}, v9, s[48:51], 0 offen")
    for i in range(32):
        a(f"v_mov_b32 v{ACC+i}, 0")
    a("s_mov_b32 s36, 0x05040100")
    a("s_mov_b32 s37, 0x07060302")
    for s in range(16):
        if s + 1 < 16:
            bload(s + 1, (s + 1) & 1)
        if s == 0:
            a("s_waitcnt vmcnt(13)")
        elif s + 1 < 16:
            a("s_waitcnt vmcnt(8)")
        else:
            a("s_waitcnt vmcnt(0)")
        bb = BR + 32 * (s & 1)
        for j in range(8):
            sel = "s36" if (j & 1) == 0 else "s37"
            for p in range(4):
                a(f"v_perm_b32 v{FR+4*j+p}, v{bb+4*(2*p+1)+(j>>1)}, v{bb+4*(2*p)+(j>>1)}, {sel}")
        a.nop(1)
        for j in range(8):
            a(f"v_mfma_f32_16x16x32_bf16 {vr(ACC+4*j,4)}, {vr(AF+4*s,4)}, {vr(FR+4*j,4)}, {vr(ACC+4*j,4)}")
    a.nop(12)
    HV = 128
    HP = 96
    T = 112
    for i in range(4):
        for jp in range(4):
            a(f"v_cvt_pk_bf16_f32 v{T}, v{ACC+4*(2*jp)+i}, v{ACC+4*(2*jp+1)+i}")
            a(f"v_lshlrev_b32 v{T+1}, 16, v{T}")
            a(f"v_and_b32 v{T+2}, 0xffff0000, v{T}")
            a(f"v_lshlrev_b32 v{T+3}, 16, v{XR+4*i+jp}")
            a(f"v_and_b32 v{T+4}, 0xffff0000, v{XR+4*i+jp}")
            a(f"v_add_f32 v{T+1}, v{T+1}, v{T+3}")
            a(f"v_add_f32 v{T+2}, v{T+2}, v{T+4}")
            a(f"v_cvt_pk_bf16_f32 v{HP+4*i+jp}, v{T+1}, v{T+2}")
            a(f"v_lshlrev_b32 v{HV+8*i+2*jp}, 16, v{HP+4*i+jp}")
            a(f"v_and_b32 v{HV+8*i+2*jp+1}, 0xffff0000, v{HP+4*i+jp}")
    a(f"s_mov_b32 s38, 0x{WS_H:x}")
    for i in range(4):
        a(f"buffer_store_dwordx4 {vr(HP+4*i,4)}, v8, s[24:27], s38 offen offset:{1024*i}")
    for i in range(4):
        a(f"v_add_f32 v{10+i}, v{HV+8*i}, v{HV+8*i+1}")
        a(f"v_mul_f32 v{14+i}, v{HV+8*i}, v{HV+8*i}")
        for j in range(2, 8):
            a(f"v_add_f32 v{10+i}, v{10+i}, v{HV+8*i+j}")
        for j in range(1, 8):
            a(f"v_fmac_f32 v{14+i}, v{HV+8*i+j}, v{HV+8*i+j}")
    row_ror_sum(a, list(range(10, 18)))
    a("s_lshl_b32 s39, s21, 7")
    a("v_lshlrev_b32 v18, 5, v4")
    a("v_add_u32 v19, s39, v18")
    for i in range(4):
        a(f"v_mov_b32 v{20+i}, v{10+i}")
        a(f"v_mov_b32 v{24+i}, v{14+i}")
    a("ds_write_b128 v19, v[20:23]")
    a("ds_write_b128 v19, v[24:27] offset:16")
    a("s_waitcnt lgkmcnt(0)")
    a("s_barrier")
    for w in range(4):
        a(f"ds_read_b128 {vr(T+0 if False else 192+8*w,4)}, v18 offset:{128*w}")
        a(f"ds_read_b128 {vr(192+8*w+4,4)}, v18 offset:{128*w+16}")
    a("s_waitcnt lgkmcnt(0)")
    for i in range(8):
        a(f"v_add_f32 v{192+i}, v{192+i}, v{200+i}")
        a(f"v_add_f32 v{208+i}, v{208+i}, v{216+i}")
        a(f"v_add_f32 v{192+i}, v{192+i}, v{208+i}")
    for i in range(4):
        m, e = 192 + i, 196 + i
        a(f"v_mul_f32 v{m}, 0x3b000000, v{m}")
        a(f"v_mul_f32 v{e}, 0x3b000000, v{e}")
        a(f"v_fma_f32 v{e}, -v{m}, v{m}, v{e}")
        a(f"v_max_f32 v{e}, 0, v{e}")
        bf16_round_to_f32(a, m, m)
        bf16_round_to_f32(a, e, e)
        a(f"v_add_f32 v{e}, 0x{f32bits(1e-5):08x}, v{e}")
        bf16_round_to_f32(a, e, e)
        a(f"v_sqrt_f32 v{e}, v{e}")
        a.nop(1)
        bf16_round_to_f32(a, e, e)
        a(f"v_rcp_f32 v{200+i}, v{e}")
    for jp in range(4):
        a(f"v_lshlrev_b32 v{224+2*jp}, 16, v{WR+jp}")
        a(f"v_and_b32 v{225+2*jp}, 0xffff0000, v{WR+jp}")
    LP = 64
    OP = 80
    for i in range(4):
        m, d, rc = 192 + i, 196 + i, 200 + i
        a(f"v_mov_b32 v{204+i}, 0")
        for jp in range(4):
            h0, h1 = HV + 8 * i + 2 * jp, HV + 8 * i + 2 * jp + 1
            a(f"v_sub_f32 v{T}, v{h0}, v{m}")
            a(f"v_sub_f32 v{T+1}, v{h1}, v{m}")
            a(f"v_cvt_pk_bf16_f32 v{T+2}, v{T}, v{T+1}")
            a(f"v_lshlrev_b32 v{T}, 16, v{T+2}")
            a(f"v_and_b32 v{T+1}, 0xffff0000, v{T+2}")
            a(f"v_mul_f32 v{T+3}, v{T}, v{rc}")
            a(f"v_mul_f32 v{T+4}, v{T+1}, v{rc}")
            a(f"v_fma_f32 v{T+5}, -v{T+3}, v{d}, v{T}")
            a(f"v_fma_f32 v{T+6}, -v{T+4}, v{d}, v{T+1}")
            a(f"v_fmac_f32 v{T+3}, v{T+5}, v{rc}")
            a(f"v_fmac_f32 v{T+4}, v{T+6}, v{rc}")
            a(f"v_cvt_pk_bf16_f32 v{LP+4*i+jp}, v{T+3}, v{T+4}")
            a(f"v_lshlrev_b32 v{T}, 16, v{LP+4*i+jp}")
            a(f"v_and_b32 v{T+1}, 0xffff0000, v{LP+4*i+jp}")
            a(f"v_fmac_f32 v{204+i}, v{T}, v{224+2*jp}")
            a(f"v_fmac_f32 v{204+i}, v{T+1}, v{225+2*jp}")
            a(f"v_add_f32 v{T}, v{T}, v{h0}")
            a(f"v_add_f32 v{T+1}, v{T+1}, v{h1}")
            a(f"v_cvt_pk_bf16_f32 v{OP+4*i+jp}, v{T}, v{T+1}")
    a(f"s_mov_b32 s38, 0x{WS_LN2:x}")
    for i in range(4):
        a(f"buffer_store_dwordx4 {vr(LP+4*i,4)}, v8, s[24:27], s38 offen offset:{1024*i}")
        a(f"buffer_store_dwordx4 {vr(OP+4*i,4)}, v8, s[28:31], 0 offen offset:{1024*i}")
    row_ror_sum(a, [204, 205, 206, 207])
    a("s_lshl_b32 s39, s21, 6")
    a("v_lshlrev_b32 v18, 4, v4")
    a("v_add_u32 v19, s39, v18")
    a("ds_write_b128 v19, v[204:207] offset:1024")
    a("s_waitcnt lgkmcnt(0)")
    a("s_barrier")
    a("s_cmp_lg_u32 s21, 0")
    a("s_cbranch_scc1 K3_END")
    for w in range(4):
        a(f"ds_read_b128 {vr(208+4*w,4)}, v18 offset:{1024+64*w}")
    a("s_waitcnt lgkmcnt(0)")
    for i in range(4):
        a(f"v_add_f32 v{208+i}, v{208+i}, v{212+i}")
        a(f"v_add_f32 v{216+i}, v{216+i}, v{220+i}")
        a(f"v_add_f32 v{208+i}, v{208+i}, v{216+i}")
        bf16_round_to_f32(a, 208 + i, 208 + i)
    a("v_lshl_add_u32 v19, v4, 2, s22")
    a("v_lshlrev_b32 v19, 2, v19")
    a(f"s_mov_b32 s38, 0x{WS_R:x}")
    a("buffer_store_dwordx4 v[208:211], v19, s[24:27], s38 offen")
    a.lab("K3_END")
    a("s_endpgm")
    return name, 256


def top2_merge(a, k1, k2, o1, o2, t):
    a(f"v_min_u32 v{t}, v{k1}, v{o1}")
    a(f"v_max_u32 v{k1}, v{k1}, v{o1}")
    a(f"v_max_u32 v{k2}, v{k2}, v{o2}")
    a(f"v_max_u32 v{k2}, v{k2}, v{t}")


def top2_select(a, lds_off):
    a("v_lshlrev_b32 v20, 5, v0")
    a(f"s_mov_b32 s38, 0x{WS_R:x}")
    a("buffer_load_dwordx4 v[24:27], v20, s[24:27], s38 offen")
    a("buffer_load_dwordx4 v[28:31], v20, s[24:27], s38 offen offset:16")
    a("v_lshlrev_b32 v21, 3, v0")
    a("v_sub_u32 v21, 0x7ff, v21")
    a("s_waitcnt vmcnt(0)")
    for i in range(8):
        r = 24 + i
        a(f"v_ashrrev_i32 v22, 31, v{r}")
        a("v_or_b32 v22, 0x80000000, v22")
        a(f"v_xor_b32 v{r}, v{r}, v22")
        a(f"v_and_b32 v{r}, 0xffff0000, v{r}")
        a(f"v_subrev_u32 v22, {i}, v21")
        a(f"v_or_b32 v{r}, v{r}, v22")
    a("v_max_u32 v32, v24, v25")
    a("v_min_u32 v33, v24, v25")
    for i in range(2, 8):
        a(f"v_min_u32 v22, v32, v{24+i}")
        a(f"v_max_u32 v32, v32, v{24+i}")
        a(f"v_max_u32 v33, v33, v22")
    for sh in (8, 4, 2, 1):
        a.nop(2)
        a(f"v_mov_b32_dpp v34, v32 row_ror:{sh} row_mask:0xf bank_mask:0xf")
        a(f"v_mov_b32_dpp v35, v33 row_ror:{sh} row_mask:0xf bank_mask:0xf")
        top2_merge(a, 32, 33, 34, 35, 22)
    a("v_lshrrev_b32 v22, 4, v0")
    a("v_lshlrev_b32 v22, 3, v22")
    a(f"ds_write_b64 v22, v[32:33] offset:{lds_off}")
    a("s_waitcnt lgkmcnt(0)")
    a("s_barrier")
    a("v_and_b32 v22, 15, v0")
    a("v_lshlrev_b32 v22, 3, v22")
    a(f"ds_read_b64 v[32:33], v22 offset:{lds_off}")
    a("s_waitcnt lgkmcnt(0)")
    for sh in (8, 4, 2, 1):
        a.nop(2)
        a(f"v_mov_b32_dpp v34, v32 row_ror:{sh} row_mask:0xf bank_mask:0xf")
        a(f"v_mov_b32_dpp v35, v33 row_ror:{sh} row_mask:0xf bank_mask:0xf")
        top2_merge(a, 32, 33, 34, 35, 22)
    a.nop(1)
    a("v_readfirstlane_b32 s60, v32")
    a("v_readfirstlane_b32 s61, v33")
    a.nop(3)
    a("s_and_b32 s60, s60, 0x7ff")
    a("s_sub_u32 s60, 0x7ff, s60")
    a("s_and_b32 s61, s61, 0x7ff")
    a("s_sub_u32 s61, 0x7ff, s61")


def gen_k4a(a):
    name = "k4a_ffn1_kernel"
    kernel_head(a, name)
    a("s_cmp_ge_u32 s2, 56")
    a("s_cbranch_scc1 K4A_END")
    a("s_load_dwordx2 s[4:5], s[0:1], 40")
    a("s_load_dwordx2 s[6:7], s[0:1], 48")
    a("s_load_dwordx2 s[8:9], s[0:1], 80")
    a("v_lshrrev_b32 v1, 6, v0")
    a.nop(1)
    a("v_readfirstlane_b32 s21, v1")
    a("v_and_b32 v3, 3, v0")
    a("v_lshrrev_b32 v4, 2, v0")
    a("s_waitcnt lgkmcnt(0)")
    a.srd(12, 4, 512 * 1792 * 2)
    a.srd(16, 6, 512 * 1792 * 2)
    a.srd(24, 8, WS_SIZE)
    WG, WU = 64, 96
    a("v_mul_u32_u24 v5, 0x7000, v4")
    a("v_lshl_add_u32 v5, v3, 4, v5")
    a("s_lshl_b32 s22, s2, 6")
    for p in range(8):
        a(f"s_add_u32 s23, s22, {p*3584}")
        a(f"buffer_load_dwordx4 {vr(WG+4*p,4)}, v5, s[12:15], s23 offen")
        a(f"buffer_load_dwordx4 {vr(WU+4*p,4)}, v5, s[16:19], s23 offen")
    top2_select(a, 32768)
    a("v_lshlrev_b32 v6, 4, v4")
    a("s_lshl_b32 s62, s60, 10")
    a(f"s_add_u32 s62, s62, 0x{WS_LN2:x}")
    a("s_lshl_b32 s63, s61, 10")
    a(f"s_add_u32 s63, s63, 0x{WS_LN2:x}")
    a("buffer_load_dwordx4 v[40:43], v6, s[24:27], s62 offen")
    a("buffer_load_dwordx4 v[44:47], v6, s[24:27], s63 offen")
    a("s_cmp_lg_u32 s2, 0")
    a("s_cbranch_scc1 K4A_NOSEL")
    a("v_mov_b32 v48, s60")
    a("v_mov_b32 v49, s61")
    a("v_mov_b32 v50, 0")
    a(f"s_mov_b32 s38, 0x{WS_SEL:x}")
    a("buffer_store_dwordx2 v[48:49], v50, s[24:27], s38 offen")
    a.lab("K4A_NOSEL")
    ACC = 128
    XS = 160
    for i in range(32):
        a(f"v_mov_b32 v{ACC+i}, 0")
    a("s_waitcnt vmcnt(0)")
    for t in range(2):
        for pp in range(4):
            a(f"v_lshlrev_b32 v{XS+8*t+2*pp}, 16, v{40+4*t+pp}")
            a(f"v_and_b32 v{XS+8*t+2*pp+1}, 0xffff0000, v{40+4*t+pp}")
    for mi, W in enumerate((WG, WU)):
        for p in range(8):
            for c in range(4):
                a(f"v_lshlrev_b32 v50, 16, v{W+4*p+c}")
                a(f"v_and_b32 v51, 0xffff0000, v{W+4*p+c}")
                for t in range(2):
                    a(f"v_fmac_f32 v{ACC+16*mi+8*t+2*c}, v50, v{XS+8*t+p}")
                    a(f"v_fmac_f32 v{ACC+16*mi+8*t+2*c+1}, v51, v{XS+8*t+p}")
    a("v_lshlrev_b32 v7, 7, v0")
    for q in range(8):
        a(f"ds_write_b128 v7, {vr(ACC+4*q,4)} offset:{16*q}")
    a("s_waitcnt lgkmcnt(0)")
    a("s_barrier")
    a("v_and_b32 v8, 127, v0")
    a("v_and_b32 v9, 31, v8")
    a("v_lshrrev_b32 v10, 3, v9")
    a("v_and_b32 v11, 7, v9")
    a("v_lshrrev_b32 v12, 5, v8")
    a("v_lshl_add_u32 v11, v12, 3, v11")
    a("v_lshlrev_b32 v11, 2, v11")
    a("v_lshl_add_u32 v11, v10, 7, v11")
    a("v_lshrrev_b32 v12, 7, v0")
    a("v_lshl_add_u32 v11, v12, 14, v11")
    for k in range(32):
        a(f"ds_read_b32 v{176+k}, v11 offset:{512*k}")
    a("s_waitcnt lgkmcnt(0)")
    for k in range(1, 32):
        a(f"v_add_f32 v176, v176, v{176+k}")
    a("s_barrier")
    a("v_lshlrev_b32 v12, 2, v0")
    a("ds_write_b32 v12, v176")
    a("s_waitcnt lgkmcnt(0)")
    a("s_barrier")
    a("s_cmp_lg_u32 s21, 0")
    a("s_cbranch_scc1 K4A_END")
    a("ds_read_b32 v13, v12")
    a("ds_read_b32 v14, v12 offset:512")
    a("ds_read_b32 v15, v12 offset:256")
    a("ds_read_b32 v16, v12 offset:768")
    a("s_waitcnt lgkmcnt(0)")
    a("v_add_f32 v13, v13, v14")
    a("v_add_f32 v15, v15, v16")
    bf16_round_to_f32(a, 13, 13)
    bf16_round_to_f32(a, 15, 15)
    a(f"v_mul_f32 v14, 0x{f32bits(-math.log2(math.e)):08x}, v13")
    a("v_exp_f32 v14, v14")
    a.nop(1)
    a("v_add_f32 v14, 1.0, v14")
    a("v_rcp_f32 v16, v14")
    a.nop(1)
    a("v_mul_f32 v17, v13, v16")
    a("v_fma_f32 v18, -v17, v14, v13")
    a("v_fmac_f32 v17, v18, v16")
    bf16_round_to_f32(a, 17, 17)
    a("v_mul_f32 v17, v17, v15")
    bf16_round_to_f32(a, 17, 17)
    a("v_lshrrev_b32 v18, 5, v0")
    a("v_mul_u32_u24 v18, 0x1c00, v18")
    a("v_and_b32 v19, 31, v0")
    a("v_lshl_add_u32 v18, v19, 2, v18")
    a("s_lshl_b32 s23, s2, 7")
    a(f"s_add_u32 s23, s23, 0x{WS_ACT:x}")
    a("buffer_store_dword v17, v18, s[24:27], s23 offen")
    a.lab("K4A_END")
    a("s_endpgm")
    return name, 208


def gen_k4b(a):
    name = "k4b_ffn2_kernel"
    kernel_head(a, name)
    a("s_cmp_ge_u32 s2, 64")
    a("s_cbranch_scc1 K4B_END")
    a("s_load_dwordx2 s[4:5], s[0:1], 56")
    a("s_load_dwordx2 s[8:9], s[0:1], 80")
    a("s_load_dwordx2 s[10:11], s[0:1], 64")
    a("v_lshrrev_b32 v1, 6, v0")
    a.nop(1)
    a("v_readfirstlane_b32 s21, v1")
    a("s_waitcnt lgkmcnt(0)")
    a.srd(12, 4, 1792 * 512 * 2)
    a.srd(24, 8, WS_SIZE)
    a.srd(28, 10, 2048 * 512 * 2)
    W = 32
    AV = 64
    a("v_lshlrev_b32 v5, 10, v0")
    a("s_lshl_b32 s22, s2, 4")
    for p in range(7):
        a(f"s_add_u32 s23, s22, {p*262144}")
        a(f"buffer_load_dwordx4 {vr(W+4*p,4)}, v5, s[12:15], s23 offen")
    a("v_lshlrev_b32 v6, 2, v0")
    a(f"s_mov_b32 s38, 0x{WS_ACT:x}")
    a(f"s_mov_b32 s39, 0x{WS_ACT+7168:x}")
    for t in range(2):
        for p in range(7):
            if p < 4:
                a(f"buffer_load_dword v{AV+7*t+p}, v6, s[24:27], s{38+t} offen offset:{1024*p}")
            else:
                if p == 4:
                    a(f"s_add_u32 s40, s{38+t}, 4096")
                a(f"buffer_load_dword v{AV+7*t+p}, v6, s[24:27], s40 offen offset:{1024*(p-4)}")
    a("v_mov_b32 v7, 0")
    a(f"s_mov_b32 s38, 0x{WS_SEL:x}")
    a("buffer_load_dwordx2 v[8:9], v7, s[24:27], s38 offen")
    ACC = 80
    for i in range(16):
        a(f"v_mov_b32 v{ACC+i}, 0")
    a("s_waitcnt vmcnt(0)")
    for p in range(7):
        for c in range(4):
            a(f"v_lshlrev_b32 v10, 16, v{W+4*p+c}")
            a(f"v_and_b32 v11, 0xffff0000, v{W+4*p+c}")
            for t in range(2):
                a(f"v_fmac_f32 v{ACC+8*t+2*c}, v10, v{AV+7*t+p}")
                a(f"v_fmac_f32 v{ACC+8*t+2*c+1}, v11, v{AV+7*t+p}")
    a("v_lshlrev_b32 v12, 6, v0")
    for q in range(4):
        a(f"ds_write_b128 v12, {vr(ACC+4*q,4)} offset:{16*q}")
    a("s_waitcnt lgkmcnt(0)")
    a("s_barrier")
    a("v_and_b32 v13, 15, v0")
    a("v_lshrrev_b32 v14, 4, v0")
    a("v_lshlrev_b32 v15, 10, v14")
    a("v_lshl_add_u32 v15, v13, 2, v15")
    for k in range(16):
        a(f"ds_read_b32 v{96+k}, v15 offset:{64*k}")
    a("s_waitcnt lgkmcnt(0)")
    for k in range(1, 16):
        a(f"v_add_f32 v96, v96, v{96+k}")
    a("v_lshlrev_b32 v16, 2, v0")
    a("ds_write_b32 v16, v96 offset:16384")
    a("s_waitcnt lgkmcnt(0)")
    a("s_barrier")
    a("s_cmp_lg_u32 s21, 0")
    a("s_cbranch_scc1 K4B_END")
    a("v_lshlrev_b32 v15, 2, v13")
    for k in range(16):
        a(f"ds_read_b32 v{96+k}, v15 offset:{16384+64*k}")
    a("v_cmp_gt_u32 vcc, 8, v13")
    a.nop(2)
    a("v_cndmask_b32 v17, v9, v8, vcc")
    a("v_lshlrev_b32 v18, 10, v17")
    a("v_and_b32 v19, 7, v13")
    a("v_lshl_add_u32 v18, v19, 1, v18")
    a(f"s_add_u32 s40, s22, 0x{WS_H:x}")
    a(f"s_add_u32 s41, s22, 0x{WS_LN2:x}")
    a("buffer_load_ushort v20, v18, s[24:27], s40 offen")
    a("buffer_load_ushort v21, v18, s[24:27], s41 offen")
    a("v_lshlrev_b32 v22, 2, v17")
    a(f"s_mov_b32 s42, 0x{WS_R:x}")
    a("buffer_load_dword v23, v22, s[24:27], s42 offen")
    a("s_waitcnt lgkmcnt(0)")
    for k in range(1, 16):
        a(f"v_add_f32 v96, v96, v{96+k}")
    bf16_round_to_f32(a, 96, 96)
    a("s_waitcnt vmcnt(0)")
    a(f"v_mul_f32 v24, 0x{f32bits(-math.log2(math.e)):08x}, v23")
    a("v_exp_f32 v24, v24")
    a.nop(1)
    a("v_add_f32 v24, 1.0, v24")
    a("v_rcp_f32 v25, v24")
    a.nop(1)
    a("v_fma_f32 v26, -v25, v24, 1.0")
    a("v_fmac_f32 v25, v26, v25")
    bf16_round_to_f32(a, 25, 25)
    a("v_mul_f32 v96, v96, v25")
    bf16_round_to_f32(a, 96, 96)
    a("v_lshlrev_b32 v20, 16, v20")
    a("v_lshlrev_b32 v21, 16, v21")
    a("v_add_f32 v21, v21, v96")
    bf16_round_to_f32(a, 21, 21)
    a("v_add_f32 v21, v21, v20")
    a("v_cvt_pk_bf16_f32 v21, v21, v21")
    a("v_cmp_gt_u32 vcc, 16, v0")
    a("s_and_saveexec_b64 s[44:45], vcc")
    a("buffer_store_short v21, v18, s[28:31], s22 offen")
    a.lab("K4B_END")
    a("s_endpgm")
    return name, 112
```

```python
import math, struct, sys

NAME = "sequential_preLN__softmax_full_mha__moe_arch_mod__prompt"

WS_QF = 0x000000
WS_KF = 0x200000
WS_VF = 0x400000
WS_O = 0x600000
WS_H = 0x800000
WS_LN2 = 0xA00000
WS_KN = 0xC00000
WS_R = 0xC40000
WS_ACT = 0xC50000
WS_SEL = 0xC60000
WS_SIZE = 0xC70000

CSCALE = 0.25 * math.log2(math.e)


def f32bits(x):
    return struct.unpack("<I", struct.pack("<f", x))[0]


class A:
    def __init__(self):
        self.l = []

    def __call__(self, s):
        self.l.append("    " + s)

    def lab(self, s):
        self.l.append(s + ":")

    def raw(self, s):
        self.l.append(s)

    def nop(self, n):
        while n > 0:
            k = min(n, 16)
            self(f"s_nop {k-1}")
            n -= k

    def srd(self, d, base, size, off=0):
        if off:
            self(f"s_add_u32 s{d}, s{base}, 0x{off:x}")
            self(f"s_addc_u32 s{d+1}, s{base+1}, 0")
        else:
            self(f"s_mov_b32 s{d}, s{base}")
            self(f"s_mov_b32 s{d+1}, s{base+1}")
        self(f"s_mov_b32 s{d+2}, 0x{size:x}")
        self(f"s_mov_b32 s{d+3}, 0x00020000")

    def text(self):
        return "\n".join(self.l) + "\n"


def vr(a, n):
    return f"v[{a}:{a+n-1}]"


def kernel_head(a, name):
    a.raw(f".globl {name}")
    a.raw(".p2align 8")
    a.raw(f".type {name},@function")
    a.lab(name)


def kd(name, vgpr, sgpr=102):
    acc = (vgpr + 3) // 4 * 4
    return f""".p2align 6
.amdhsa_kernel {name}
  .amdhsa_next_free_vgpr {vgpr}
  .amdhsa_next_free_sgpr {sgpr}
  .amdhsa_accum_offset {acc}
  .amdhsa_group_segment_fixed_size 0
  .amdhsa_kernarg_size 88
  .amdhsa_user_sgpr_count 2
  .amdhsa_user_sgpr_kernarg_segment_ptr 1
  .amdhsa_system_sgpr_workgroup_id_x 1
.end_amdhsa_kernel
"""


def bf16_round_to_f32(a, dst, src):
    a(f"v_cvt_pk_bf16_f32 v{dst}, v{src}, v{src}")
    a(f"v_lshlrev_b32 v{dst}, 16, v{dst}")


def xhalf_add(a, v, t, op="v_add_f32"):
    a(f"v_mov_b32 v{t}, v{v}")
    a.nop(2)
    a(f"v_permlane32_swap_b32 v{v}, v{t}")
    a.nop(2)
    a(f"{op} v{v}, v{v}, v{t}")


def gen_k1(a):
    name = "k1_qkv_kernel"
    kernel_head(a, name)
    a("s_cmp_ge_u32 s2, 256")
    a("s_cbranch_scc1 K1_END")
    a("s_load_dwordx2 s[4:5], s[0:1], 0")
    a("s_load_dwordx2 s[6:7], s[0:1], 8")
    a("s_load_dwordx2 s[8:9], s[0:1], 80")
    a("s_and_b32 s3, s2, 15")
    a("s_lshr_b32 s20, s2, 4")
    a("v_lshrrev_b32 v1, 6, v0")
    a("v_and_b32 v2, 63, v0")
    a.nop(1)
    a("v_readfirstlane_b32 s21, v1")
    a("v_and_b32 v3, 31, v2")
    a("v_lshrrev_b32 v4, 5, v2")
    a("s_waitcnt lgkmcnt(0)")
    a.srd(12, 4, 2048 * 512 * 2)
    a.srd(16, 6, 512 * 1536 * 2)
    a.srd(24, 8, WS_SIZE)
    XA = 128
    ACC = 64
    BF = 32
    a("s_lshl_b32 s22, s20, 7")
    a("s_lshl_b32 s23, s21, 5")
    a("s_add_u32 s22, s22, s23")
    a("v_add_u32 v5, s22, v3")
    a("v_lshlrev_b32 v5, 10, v5")
    a("v_lshlrev_b32 v6, 4, v4")
    a("v_add_u32 v5, v5, v6")
    for s in range(32):
        a(f"buffer_load_dwordx4 {vr(XA+4*s,4)}, v5, s[12:15], 0 offen offset:{32*s}")
    for b in range(3):
        a(f"v_add_u32 v6, {64*b}, v2")
        a("v_mul_u32_u24 v7, 0xaaab, v6")
        a("v_lshrrev_b32 v7, 19, v7")
        a("v_mul_u32_u24 v8, 12, v7")
        a("v_sub_u32 v8, v6, v8")
        a("v_mul_u32_u24 v7, 0xc00, v7")
        a("v_lshlrev_b32 v8, 4, v8")
        a(f"v_add_u32 v{10+b}, v7, v8")
    a("s_lshl_b32 s28, s21, 3")
    a("s_mul_i32 s30, s28, 3072")
    a("s_mul_i32 s31, s28, 49152")
    a("s_mul_i32 s29, s3, 192")
    a("s_add_u32 s31, s31, s29")
    for aa in range(8):
        for b in range(3):
            a(f"s_add_u32 s32, s30, {aa*3072 + b*1024}")
            a("s_mov_b32 m0, s32")
            a(f"s_add_u32 s33, s31, {aa*49152}")
            a(f"buffer_load_dwordx4 v{10+b}, s[16:19], s33 offen lds")
    a("v_and_b32 v6, 15, v2")
    a("v_lshrrev_b32 v7, 2, v6")
    a("v_and_b32 v8, 3, v6")
    a("v_lshl_add_u32 v7, v4, 3, v7")
    a("v_mul_u32_u24 v7, 192, v7")
    a("v_lshrrev_b32 v9, 4, v2")
    a("v_and_b32 v9, 1, v9")
    a("v_lshlrev_b32 v9, 5, v9")
    a("v_lshl_add_u32 v9, v8, 3, v9")
    a("v_add_u32 v13, v7, v9")
    a("v_add_u32 v14, 0xc000, v13")
    a("v_mov_b32 v15, 0x3f803f80")
    for i in range(16, 24):
        a(f"v_mov_b32 v{i}, 0")
    a("s_waitcnt vmcnt(24)")
    for i in range(128):
        a(f"v_dot2_f32_bf16 v{16+(i&1)}, v{XA+i}, v15, v{16+(i&1)}")
        a(f"v_dot2_f32_bf16 v{18+(i&1)}, v{XA+i}, v{XA+i}, v{18+(i&1)}")
    a.nop(3)
    a("v_add_f32 v16, v16, v17")
    a("v_add_f32 v18, v18, v19")
    xhalf_add(a, 16, 17)
    xhalf_add(a, 18, 19)
    a("v_mul_f32 v16, 0x3b000000, v16")
    a("v_mul_f32 v18, 0x3b000000, v18")
    a("v_fma_f32 v18, -v16, v16, v18")
    a("v_max_f32 v18, 0, v18")
    bf16_round_to_f32(a, 16, 16)
    bf16_round_to_f32(a, 18, 18)
    a(f"v_add_f32 v18, 0x{f32bits(1e-5):08x}, v18")
    bf16_round_to_f32(a, 18, 18)
    a("v_sqrt_f32 v18, v18")
    a.nop(1)
    bf16_round_to_f32(a, 18, 18)
    a("v_rcp_f32 v18, v18")
    a("v_sub_f32 v17, 0, v16")
    a("v_cvt_pk_bf16_f32 v24, v17, v17")
    a("v_cmp_eq_u32 vcc, 0, v4")
    a.nop(2)
    a("v_cndmask_b32 v24, 0, v24, vcc")
    a("v_mov_b32 v25, 0")
    a("v_mov_b32 v26, 0")
    a("v_mov_b32 v27, 0")
    a("s_lshl_b32 s34, s21, 7")
    a("s_add_u32 s34, s34, 98304")
    a("v_lshlrev_b32 v6, 2, v3")
    a("v_add_u32 v6, s34, v6")
    a("ds_write_b32 v6, v18")
    for i in range(48):
        a(f"v_mov_b32 v{ACC+i}, 0")
    a("s_waitcnt vmcnt(0) lgkmcnt(0)")
    a("s_barrier")
    a("s_cmp_lt_u32 s3, 10")
    a("s_cbranch_scc1 K1_P0")
    a("s_cmp_eq_u32 s3, 10")
    a("s_cbranch_scc1 K1_P1")
    a("s_branch K1_P2")

    def trreads(s, buf):
        base = 13 if s < 16 else 14
        so = (s % 16) * 3072
        for j in range(3):
            for u in range(2):
                a(f"ds_read_b64_tr_b16 {vr(BF+12*buf+4*j+2*u,2)}, v{base} offset:{so+u*768+j*64}")

    for pi, pat in enumerate([("S", "S", "S"), ("S", "S", "N"), ("N", "N", "N")]):
        a.lab(f"K1_P{pi}")
        trreads(0, 0)
        for s in range(32):
            if s + 1 < 32:
                trreads(s + 1, (s + 1) & 1)
                a("s_waitcnt lgkmcnt(6)")
            else:
                a("s_waitcnt lgkmcnt(0)")
            bb = BF + 12 * (s & 1)
            for j in range(3):
                xa = vr(XA + 4 * s, 4)
                wb = vr(bb + 4 * j, 4)
                acc = vr(ACC + 16 * j, 16)
                if pat[j] == "S":
                    a(f"v_mfma_f32_32x32x16_bf16 {acc}, {wb}, {xa}, {acc}")
                else:
                    a(f"v_mfma_f32_32x32x16_bf16 {acc}, {xa}, {wb}, {acc}")
                for i in range(4):
                    a(f"v_dot2_f32_bf16 v{20+j}, v{bb+4*j+i}, v15, v{20+j}")
        a.nop(3)
        for j in range(3):
            xhalf_add(a, 20 + j, 23)
        for j in range(3):
            w = 28
            bf16_round_to_f32(a, 56, 20 + j)
            a(f"v_sub_f32 v57, v{20+j}, v56")
            a("v_cvt_pk_bf16_f32 v28, v56, v57")
            a("v_cndmask_b32 v28, 0, v28, vcc")
            a("v_mov_b32 v29, 0")
            a("v_mov_b32 v30, 0")
            a("v_mov_b32 v31, 0")
            a.nop(2)
            acc = vr(ACC + 16 * j, 16)
            if pat[j] == "S":
                a(f"v_mfma_f32_32x32x16_bf16 {acc}, v[28:31], v[24:27], {acc}")
            else:
                a(f"v_mfma_f32_32x32x16_bf16 {acc}, v[24:27], v[28:31], {acc}")
            a.nop(4)
        a.nop(16)
        a("s_lshr_b32 s36, s22, 5")
        for j in range(3):
            acc = ACC + 16 * j
            a("s_mul_i32 s40, s3, 96")
            a(f"s_add_u32 s40, s40, {32*j}")
            a("s_lshr_b32 s41, s40, 9")
            a("s_and_b32 s42, s40, 511")
            a("s_lshr_b32 s42, s42, 4")
            if pat[j] == "S":
                a("s_cmp_eq_u32 s41, 0")
                a(f"s_cselect_b32 s43, 0x{f32bits(CSCALE):08x}, 1.0")
                a("v_mul_f32 v56, s43, v18")
                for i in range(16):
                    a(f"v_mul_f32 v{acc+i}, v{acc+i}, v56")
                a("s_lshl_b32 s44, s41, 21")
                a("s_lshl_b32 s45, s42, 16")
                a("s_add_u32 s44, s44, s45")
                a("s_lshl_b32 s45, s36, 10")
                a("s_add_u32 s44, s44, s45")
                a("s_add_u32 s45, s44, 0x10000")
                a("v_lshlrev_b32 v57, 9, v4")
                a("v_lshl_add_u32 v57, v3, 4, v57")
                for i in range(8):
                    a(f"v_cvt_pk_bf16_f32 v{32+i}, v{acc+2*i}, v{acc+2*i+1}")
                a("buffer_store_dwordx4 v[32:35], v57, s[24:27], s44 offen")
                a("buffer_store_dwordx4 v[36:39], v57, s[24:27], s45 offen")
                a("s_cmp_eq_u32 s41, 1")
                a(f"s_cbranch_scc0 K1_P{pi}_NK{j}")
                a(f"v_mul_f32 v58, v{acc}, v{acc}")
                a(f"v_mul_f32 v59, v{acc+8}, v{acc+8}")
                for i in range(1, 8):
                    a(f"v_fmac_f32 v58, v{acc+i}, v{acc+i}")
                    a(f"v_fmac_f32 v59, v{acc+8+i}, v{acc+8+i}")
                xhalf_add(a, 58, 60)
                xhalf_add(a, 59, 60)
                a("v_add_u32 v60, s22, v3")
                a("v_lshlrev_b32 v60, 2, v60")
                a("s_lshl_b32 s46, s42, 13")
                a(f"s_add_u32 s46, s46, 0x{WS_KN:x}")
                a("s_add_u32 s47, s46, 8192")
                a("buffer_store_dword v58, v60, s[24:27], s46 offen")
                a("buffer_store_dword v59, v60, s[24:27], s47 offen")
                a.lab(f"K1_P{pi}_NK{j}")
                a.nop(2)
            else:
                a("v_lshlrev_b32 v57, 4, v4")
                a("v_add_u32 v57, s34, v57")
                for jj in range(4):
                    a(f"ds_read_b128 {vr(40+4*jj,4)}, v57 offset:{32*jj}")
                a("s_waitcnt lgkmcnt(0)")
                for i in range(16):
                    a(f"v_mul_f32 v{acc+i}, v{acc+i}, v{40+i}")
                a("s_lshl_b32 s45, s42, 16")
                a(f"s_add_u32 s44, s45, 0x{WS_VF:x}")
                a("s_lshl_b32 s45, s36, 10")
                a("s_add_u32 s44, s44, s45")
                a("v_lshrrev_b32 v57, 4, v3")
                a("v_lshlrev_b32 v57, 16, v57")
                a("v_lshl_add_u32 v57, v4, 8, v57")
                a("v_and_b32 v58, 15, v3")
                a("v_lshl_add_u32 v57, v58, 4, v57")
                for i in range(8):
                    a(f"v_cvt_pk_bf16_f32 v{32+i}, v{acc+2*i}, v{acc+2*i+1}")
                a("buffer_store_dwordx4 v[32:35], v57, s[24:27], s44 offen")
                a("buffer_store_dwordx4 v[36:39], v57, s[24:27], s44 offen offset:512")
                a.nop(2)
        a("s_branch K1_END")
    a.lab("K1_END")
    a("s_endpgm")
    return name, 256


def gen_k2(a):
    name = "k2_attn_kernel"
    kernel_head(a, name)
    a("s_cmp_ge_u32 s2, 256")
    a("s_cbranch_scc1 K2_END")
    a("s_load_dwordx2 s[8:9], s[0:1], 80")
    a("s_and_b32 s3, s2, 31")
    a("s_lshr_b32 s20, s2, 5")
    a("v_lshrrev_b32 v1, 6, v0")
    a("v_and_b32 v2, 63, v0")
    a.nop(1)
    a("v_readfirstlane_b32 s21, v1")
    a("v_and_b32 v3, 31, v2")
    a("v_lshrrev_b32 v4, 5, v2")
    a("s_waitcnt lgkmcnt(0)")
    a.srd(24, 8, WS_SIZE)
    a("s_lshl_b32 s22, s3, 16")
    a("v_lshlrev_b32 v5, 4, v2")
    QF = 8
    a("s_lshl_b32 s23, s20, 3")
    a("s_add_u32 s23, s23, s21")
    a("s_lshl_b32 s28, s23, 10")
    a("s_add_u32 s28, s28, s22")
    a("v_lshlrev_b32 v6, 9, v4")
    a("v_lshl_add_u32 v6, v3, 4, v6")
    a(f"buffer_load_dwordx4 {vr(QF,4)}, v6, s[24:27], s28 offen")
    a("s_lshl_b32 s29, s3, 13")
    a(f"s_add_u32 s29, s29, 0x{WS_KN:x}")
    KNV = 64
    for i in range(8):
        if i < 4:
            a(f"buffer_load_dwordx4 {vr(KNV+4*i,4)}, v5, s[24:27], s29 offen offset:{1024*i}")
        else:
            if i == 4:
                a("s_add_u32 s30, s29, 4096")
            a(f"buffer_load_dwordx4 {vr(KNV+4*i,4)}, v5, s[24:27], s30 offen offset:{1024*(i-4)}")
    a(f"s_add_u32 s31, s22, 0x{WS_KF:x}")
    a(f"s_add_u32 s32, s22, 0x{WS_VF:x}")
    a("s_lshl_b32 s33, s21, 10")
    for c in range(8):
        a(f"s_add_u32 s34, s33, {c*8192}")
        a("s_mov_b32 m0, s34")
        a("s_add_u32 s35, s31, s34")
        a("buffer_load_dwordx4 v5, s[24:27], s35 offen lds")
        a(f"s_add_u32 s34, s34, 65536")
        a("s_mov_b32 m0, s34")
        a(f"s_add_u32 s35, s33, {c*8192}")
        a("s_add_u32 s35, s32, s35")
        a("buffer_load_dwordx4 v5, s[24:27], s35 offen lds")
    a("v_lshlrev_b32 v7, 4, v0")
    a("v_add_u32 v7, 0x20000, v7")
    for i in range(4):
        a(f"v_mov_b32 v{24+i}, 0x3f803f80")
    a("ds_write_b128 v7, v[24:27]")
    a("v_mov_b32 v14, v6")
    a("v_and_b32 v17, 15, v3")
    a("v_lshlrev_b32 v15, 8, v4")
    a("v_lshl_add_u32 v15, v17, 4, v15")
    a("v_cmp_gt_u32 vcc, 16, v3")
    a("v_add_u32 v18, 0x10000, v15")
    a("v_add_u32 v19, 0x20000, v15")
    a("v_mov_b32 v16, 0x1000")
    a.nop(1)
    a("v_cndmask_b32 v15, v19, v18, vcc")
    a("v_cndmask_b32 v16, 0, v16, vcc")
    a("v_mov_b32 v20, v14")
    a("v_mov_b32 v21, v15")
    a("s_waitcnt vmcnt(16)")
    a(f"v_max3_f32 v17, v{KNV}, v{KNV+1}, v{KNV+2}")
    for i in range(3, 31, 2):
        a(f"v_max3_f32 v17, v17, v{KNV+i}, v{KNV+i+1}")
    a(f"v_max_f32 v17, v17, v{KNV+31}")
    for sh in (8, 4, 2, 1):
        a.nop(2)
        a(f"v_max_f32_dpp v17, v17, v17 row_ror:{sh} row_mask:0xf bank_mask:0xf")
    a.nop(2)
    a("v_readlane_b32 s36, v17, 0")
    a("v_readlane_b32 s37, v17, 16")
    a("v_readlane_b32 s38, v17, 32")
    a("v_readlane_b32 s39, v17, 48")
    a.nop(2)
    a("v_mov_b32 v17, s36")
    a("v_max_f32 v17, s37, v17")
    a("v_max_f32 v17, s38, v17")
    a("v_max_f32 v17, s39, v17")
    a(f"v_dot2_f32_bf16 v18, v{QF}, v{QF}, 0")
    for i in range(1, 4):
        a(f"v_dot2_f32_bf16 v18, v{QF+i}, v{QF+i}, v18")
    a.nop(3)
    xhalf_add(a, 18, 19)
    a("v_mul_f32 v17, v17, v18")
    a("v_sqrt_f32 v17, v17")
    a.nop(1)
    a("v_sub_f32 v17, 0, v17")
    NEGM = 32
    S0 = 48
    S1 = 64
    OA = 80
    P = 96
    KB = 104
    VB = 112
    a("s_mov_b32 s40, 0")
    a("s_waitcnt vmcnt(0) lgkmcnt(0)")
    a("s_barrier")
    a.lab("K2_MAIN")
    for i in range(16):
        a(f"v_mov_b32 v{NEGM+i}, v17")
    for i in range(16):
        a(f"v_mov_b32 v{OA+i}, 0")
    a("v_mov_b32 v14, v20")
    a("v_mov_b32 v15, v21")
    S = [S0, S1]
    a(f"ds_read_b128 {vr(KB,4)}, v14")
    a(f"ds_read_b128 {vr(KB+4,4)}, v14 offset:1024")
    a(f"ds_read_b128 {vr(VB,4)}, v15")
    a(f"ds_read_b128 {vr(VB+4,4)}, v15 offset:512")
    a("s_waitcnt lgkmcnt(3)")
    a(f"v_mfma_f32_32x32x16_bf16 {vr(S0,16)}, {vr(KB,4)}, {vr(QF,4)}, {vr(NEGM,16)}")
    a.nop(8)
    a("s_mov_b32 s41, 0")
    a.lab("K2_LOOP")
    for u in range(4):
        cur = S[u & 1]
        nxt = S[(u + 1) & 1]
        kb_next = KB + 4 * ((u + 1) & 1)
        kb_free = KB + 4 * (u & 1)
        vb_cur = VB + 8 * (u & 1)
        vb_free = VB + 8 * ((u + 1) & 1)
        a("s_waitcnt lgkmcnt(2)")
        a(f"v_mfma_f32_32x32x16_bf16 {vr(nxt,16)}, {vr(kb_next,4)}, {vr(QF,4)}, {vr(NEGM,16)}")
        a(f"ds_read_b128 {vr(kb_free,4)}, v14 offset:{1024*(u+2)}")
        a(f"ds_read_b128 {vr(vb_free,4)}, v15 offset:{1024*(u+1)}")
        a(f"ds_read_b128 {vr(vb_free+4,4)}, v15 offset:{1024*(u+1)+512}")
        for i in range(8):
            a(f"v_exp_f32 v{cur+i}, v{cur+i}")
        a(f"v_exp_f32 v{cur+8}, v{cur+8}")
        for i in range(4):
            a(f"v_cvt_pk_bf16_f32 v{P+i}, v{cur+2*i}, v{cur+2*i+1}")
        a(f"v_exp_f32 v{cur+9}, v{cur+9}")
        a(f"v_exp_f32 v{cur+10}, v{cur+10}")
        a("s_waitcnt lgkmcnt(3)")
        a(f"v_mfma_f32_32x32x16_bf16 {vr(OA,16)}, {vr(vb_cur,4)}, {vr(P,4)}, {vr(OA,16)}")
        for i in range(11, 16):
            a(f"v_exp_f32 v{cur+i}, v{cur+i}")
        a.nop(1)
        for i in range(4, 8):
            a(f"v_cvt_pk_bf16_f32 v{P+i}, v{cur+2*i}, v{cur+2*i+1}")
        if u == 3:
            a("v_add_u32 v14, 0x1000, v14")
            a("v_add_u32 v15, v16, v15")
            a("s_add_u32 s41, s41, 1")
            a("s_cmp_lt_u32 s41, 16")
        else:
            a.nop(2)
        a(f"v_mfma_f32_32x32x16_bf16 {vr(OA,16)}, {vr(vb_cur+4,4)}, {vr(P+4,4)}, {vr(OA,16)}")
    a("s_cbranch_scc1 K2_LOOP")
    a("s_waitcnt lgkmcnt(0)")
    a.nop(16)
    a("s_cmp_lg_u32 s40, 0")
    a("s_cbranch_scc1 K2_EPI")
    a(f"v_mov_b32 v18, 0x{f32bits(2.0**-80):08x}")
    a(f"v_cmp_nge_f32 vcc, v{OA+8}, v18")
    a.nop(4)
    a("s_cbranch_vccz K2_EPI")
    a("s_mov_b32 s40, 1")
    a("v_mov_b32 v14, v20")
    a("v_mov_b32 v18, 0xff800000")
    a("s_mov_b32 s41, 0")
    a.lab("K2_MAXP")
    a(f"ds_read_b128 {vr(KB,4)}, v14")
    a("s_waitcnt lgkmcnt(0)")
    a(f"v_mfma_f32_32x32x16_bf16 {vr(S0,16)}, {vr(KB,4)}, {vr(QF,4)}, 0")
    a.nop(16)
    for i in range(0, 16, 2):
        a(f"v_max3_f32 v18, v18, v{S0+i}, v{S0+i+1}")
    a("v_add_u32 v14, 0x400, v14")
    a("s_add_u32 s41, s41, 1")
    a("s_cmp_lt_u32 s41, 64")
    a("s_cbranch_scc1 K2_MAXP")
    xhalf_add(a, 18, 19, "v_max_f32")
    a("v_sub_f32 v17, 0, v18")
    a("s_branch K2_MAIN")
    a.lab("K2_EPI")
    a(f"v_rcp_f32 v18, v{OA+8}")
    a.nop(1)
    for i in range(8):
        a(f"v_mul_f32 v{OA+i}, v{OA+i}, v18")
    for i in range(4):
        a(f"v_cvt_pk_bf16_f32 v{P+i}, v{OA+2*i}, v{OA+2*i+1}")
    a("s_lshl_b32 s42, s23, 5")
    a("v_add_u32 v19, s42, v3")
    a("v_lshlrev_b32 v19, 10, v19")
    a("v_lshl_add_u32 v19, v4, 3, v19")
    a("s_lshl_b32 s43, s3, 5")
    a(f"s_add_u32 s43, s43, 0x{WS_O:x}")
    a(f"buffer_store_dwordx2 {vr(P,2)}, v19, s[24:27], s43 offen")
    a(f"buffer_store_dwordx2 {vr(P+2,2)}, v19, s[24:27], s43 offen offset:16")
    a.lab("K2_END")
    a("s_endpgm")
    return name, 128


if __name__ == "__main__":
    from gen2 import gen_k3, gen_k4a, gen_k4b
    ref = open(f"cdna_kernels/{NAME}.s.ref").read().splitlines()
    head = []
    for ln in ref:
        if ln.startswith(";") and "@launch" not in ln:
            head.append(ln)
        elif not ln.startswith(";"):
            break
    a = A()
    ks = []
    launches = []
    ks.append(gen_k1(a)); launches.append((256, 256, 98816))
    ks.append(gen_k2(a)); launches.append((256, 512, 139264))
    ks.append(gen_k3(a)); launches.append((128, 256, 4096))
    ks.append(gen_k4a(a)); launches.append((56, 256, 36864))
    ks.append(gen_k4b(a)); launches.append((64, 256, 20480))
    nk = int(sys.argv[1]) if len(sys.argv) > 1 else len(ks)
    out = "\n".join(head) + "\n"
    for (n, _), (g, b, lds) in list(zip(ks, launches))[:nk]:
        out += f"; @launch kernel={n} grid=({g},1,1) block=({b},1,1) lds={lds}\n"
    out += '.amdgcn_target "amdgcn-amd-amdhsa--gfx950"\n.text\n'
    out += a.text()
    out += '.section .rodata,"a"\n'
    for n, v in ks:
        out += kd(n, v)
    open(f"cdna_kernels/{NAME}.s", "w").write(out)
    print("wrote", len(out), "bytes")
```

```python
from gen import *

WS_PS = 0xC80000
WS_SW = 0xC98000
WS_YP = 0xCA0000
assert WS_YP + 224 * 4096 <= WS_SIZE


def row_ror_sum(a, regs):
    for sh in (8, 4, 2, 1):
        a.nop(2)
        for r in regs:
            a(f"v_add_f32_dpp v{r}, v{r}, v{r} row_ror:{sh} row_mask:0xf bank_mask:0xf")


def ln_consts(a, m, e, rc):
    a(f"v_mul_f32 v{m}, 0x3b000000, v{m}")
    a(f"v_mul_f32 v{e}, 0x3b000000, v{e}")
    a(f"v_fma_f32 v{e}, -v{m}, v{m}, v{e}")
    a(f"v_max_f32 v{e}, 0, v{e}")
    bf16_round_to_f32(a, m, m)
    bf16_round_to_f32(a, e, e)
    a(f"v_add_f32 v{e}, 0x{f32bits(1e-5):08x}, v{e}")
    bf16_round_to_f32(a, e, e)
    a(f"v_sqrt_f32 v{e}, v{e}")
    a.nop(1)
    bf16_round_to_f32(a, e, e)
    a(f"v_rcp_f32 v{rc}, v{e}")
    a.nop(1)


def ln_pair(a, hp, m, d, rc, T, lp):
    a(f"v_lshlrev_b32 v{T+7}, 16, v{hp}")
    a(f"v_and_b32 v{T+8}, 0xffff0000, v{hp}")
    a(f"v_sub_f32 v{T}, v{T+7}, v{m}")
    a(f"v_sub_f32 v{T+1}, v{T+8}, v{m}")
    a(f"v_cvt_pk_bf16_f32 v{T+2}, v{T}, v{T+1}")
    a(f"v_lshlrev_b32 v{T}, 16, v{T+2}")
    a(f"v_and_b32 v{T+1}, 0xffff0000, v{T+2}")
    a(f"v_mul_f32 v{T+3}, v{T}, v{rc}")
    a(f"v_mul_f32 v{T+4}, v{T+1}, v{rc}")
    a(f"v_fma_f32 v{T+5}, -v{T+3}, v{d}, v{T}")
    a(f"v_fma_f32 v{T+6}, -v{T+4}, v{d}, v{T+1}")
    a(f"v_fmac_f32 v{T+3}, v{T+5}, v{rc}")
    a(f"v_fmac_f32 v{T+4}, v{T+6}, v{rc}")
    a(f"v_cvt_pk_bf16_f32 v{lp}, v{T+3}, v{T+4}")
    a(f"v_lshlrev_b32 v{T}, 16, v{lp}")
    a(f"v_and_b32 v{T+1}, 0xffff0000, v{lp}")


def gen_k3(a):
    name = "k3_proj_kernel"
    kernel_head(a, name)
    a("s_cmp_ge_u32 s2, 256")
    a("s_cbranch_scc1 K3_END")
    a("s_load_dwordx2 s[4:5], s[0:1], 0")
    a("s_load_dwordx2 s[6:7], s[0:1], 16")
    a("s_load_dwordx2 s[8:9], s[0:1], 80")
    a("s_load_dwordx2 s[44:45], s[0:1], 32")
    a("v_lshrrev_b32 v1, 6, v0")
    a("v_and_b32 v2, 63, v0")
    a.nop(1)
    a("v_readfirstlane_b32 s21, v1")
    a("v_and_b32 v3, 15, v2")
    a("v_lshrrev_b32 v4, 4, v2")
    a("s_and_b32 s3, s2, 3")
    a("s_lshr_b32 s20, s2, 2")
    a("s_lshl_b32 s22, s20, 5")
    a("s_lshl_b32 s23, s3, 8")
    AF = 32
    BR = 64
    FR = 128
    ACC = 160
    XR = 224
    WR = 232
    a("v_lshlrev_b32 v5, 13, v4")
    a("v_lshl_add_u32 v5, v3, 4, v5")
    a("v_add_u32 v5, s23, v5")
    a("v_add_u32 v6, 0x1000, v5")
    a("s_lshl_b32 s34, s21, 17")
    a("v_add_u32 v7, s22, v3")
    a("v_lshlrev_b32 v7, 10, v7")
    a("v_lshl_add_u32 v7, v4, 4, v7")
    a("s_lshl_b32 s35, s21, 8")
    a(f"s_add_u32 s35, s35, 0x{WS_O:x}")
    a("s_add_u32 s36, s35, 16384")
    a("s_lshr_b32 s37, s21, 1")
    a("s_lshl_b32 s37, s37, 4")
    a("s_and_b32 s38, s21, 1")
    a("s_lshl_b32 s38, s38, 1")
    a("s_add_u32 s37, s37, s38")
    a("s_add_u32 s37, s37, s22")
    a("v_lshl_add_u32 v10, v4, 2, s37")
    a("v_lshlrev_b32 v8, 10, v10")
    a("v_lshl_add_u32 v8, v3, 4, v8")
    a("v_add_u32 v8, s23, v8")
    a("v_lshlrev_b32 v9, 4, v3")
    a("v_add_u32 v9, s23, v9")
    a("s_waitcnt lgkmcnt(0)")
    a.srd(12, 4, 2048 * 512 * 2)
    a.srd(16, 6, 512 * 512 * 2)
    a.srd(24, 8, WS_SIZE)
    a.srd(48, 44, 1024)

    def bload(s, buf):
        a(f"s_add_u32 s39, s34, {s*32768}")
        for r in range(8):
            base = 5 if r < 4 else 6
            a(f"buffer_load_dwordx4 {vr(BR+32*buf+4*r,4)}, v{base}, s[16:19], s39 offen offset:{(r&3)*1024}")
    bload(0, 0)
    for rt in range(2):
        for s in range(4):
            a(f"buffer_load_dwordx4 {vr(AF+16*rt+4*s,4)}, v7, s[24:27], s{35+rt} offen offset:{64*s}")
    bload(1, 1)
    for i in range(2):
        a(f"buffer_load_dwordx4 {vr(XR+4*i,4)}, v8, s[12:15], 0 offen offset:{1024*i}")
    a(f"buffer_load_dwordx4 {vr(WR,4)}, v9, s[48:51], 0 offen")
    for i in range(64):
        a(f"v_mov_b32 v{ACC+i}, 0")
    a("s_mov_b32 s40, 0x05040100")
    a("s_mov_b32 s41, 0x07060302")
    a(";@T 0")
    waits = {0: 11, 1: 11, 2: 8, 3: 0}
    for s in range(4):
        a(f"s_waitcnt vmcnt({waits[s]})")
        if s == 0:
            a(";@T 1")
        bb = BR + 32 * (s & 1)
        for j in range(8):
            sel = "s40" if (j & 1) == 0 else "s41"
            for p in range(4):
                a(f"v_perm_b32 v{FR+4*j+p}, v{bb+4*(2*p+1)+(j>>1)}, v{bb+4*(2*p)+(j>>1)}, {sel}")
        if s + 2 < 4:
            bload(s + 2, s & 1)
        else:
            a.nop(1)
        for j in range(8):
            for rt in range(2):
                acc = vr(ACC + 32 * rt + 4 * j, 4)
                a(f"v_mfma_f32_16x16x32_bf16 {acc}, {vr(AF+16*rt+4*s,4)}, {vr(FR+4*j,4)}, {acc}")
    a(";@T 2")
    a.nop(10)
    a("v_lshlrev_b32 v11, 3, v2")
    a("s_lshl_b32 s39, s21, 12")
    a("v_add_u32 v12, s39, v11")
    for dest in range(4):
        rt, ip = dest >> 1, dest & 1
        for j in range(8):
            a(f"ds_write_b64 v12, {vr(ACC+32*rt+4*j+2*ip,2)} offset:{dest*16384+j*512}")
    a("s_waitcnt lgkmcnt(0)")
    a("s_barrier")
    a("s_lshl_b32 s39, s21, 14")
    a("v_add_u32 v12, s39, v11")
    RD = 64
    for src in range(4):
        for j in range(8):
            a(f"ds_read_b64 {vr(RD+16*src+2*j,2)}, v12 offset:{src*4096+j*512}")
    a("s_waitcnt lgkmcnt(0)")
    for k in range(16):
        a(f"v_add_f32 v{RD+k}, v{RD+k}, v{RD+16+k}")
        a(f"v_add_f32 v{RD+32+k}, v{RD+32+k}, v{RD+48+k}")
        a(f"v_add_f32 v{RD+k}, v{RD+k}, v{RD+32+k}")
    a(";@T 3")
    T = 128
    HP = 144
    for jp in range(4):
        a(f"v_lshlrev_b32 v{160+2*jp}, 16, v{WR+jp}")
        a(f"v_and_b32 v{161+2*jp}, 0xffff0000, v{WR+jp}")
    for ii in range(2):
        for k in range(3):
            a(f"v_mov_b32 v{16+3*ii+k}, 0")
        for jp in range(4):
            a(f"v_cvt_pk_bf16_f32 v{T}, v{RD+2*(2*jp)+ii}, v{RD+2*(2*jp+1)+ii}")
            a(f"v_lshlrev_b32 v{T+1}, 16, v{T}")
            a(f"v_and_b32 v{T+2}, 0xffff0000, v{T}")
            a(f"v_lshlrev_b32 v{T+3}, 16, v{XR+4*ii+jp}")
            a(f"v_and_b32 v{T+4}, 0xffff0000, v{XR+4*ii+jp}")
            a(f"v_add_f32 v{T+1}, v{T+1}, v{T+3}")
            a(f"v_add_f32 v{T+2}, v{T+2}, v{T+4}")
            a(f"v_cvt_pk_bf16_f32 v{HP+4*ii+jp}, v{T+1}, v{T+2}")
            a(f"v_lshlrev_b32 v{T+1}, 16, v{HP+4*ii+jp}")
            a(f"v_and_b32 v{T+2}, 0xffff0000, v{HP+4*ii+jp}")
            s_, q_, d_ = 16 + 3 * ii, 17 + 3 * ii, 18 + 3 * ii
            a(f"v_add_f32 v{s_}, v{s_}, v{T+1}")
            a(f"v_fmac_f32 v{q_}, v{T+1}, v{T+1}")
            a(f"v_fmac_f32 v{d_}, v{T+1}, v{160+2*jp}")
            a(f"v_add_f32 v{s_}, v{s_}, v{T+2}")
            a(f"v_fmac_f32 v{q_}, v{T+2}, v{T+2}")
            a(f"v_fmac_f32 v{d_}, v{T+2}, v{161+2*jp}")
    a(f"s_mov_b32 s38, 0x{WS_H:x}")
    for ii in range(2):
        a(f"buffer_store_dwordx4 {vr(HP+4*ii,4)}, v8, s[24:27], s38 offen offset:{1024*ii}")
    row_ror_sum(a, list(range(16, 22)))
    a("v_lshlrev_b32 v13, 2, v10")
    a("s_lshl_b32 s39, s3, 13")
    a(f"s_add_u32 s39, s39, 0x{WS_PS:x}")
    for k in range(3):
        a(f"v_mov_b32 v{24+2*k}, v{16+k}")
        a(f"v_mov_b32 v{25+2*k}, v{19+k}")
    for k in range(3):
        a(f"s_add_u32 s38, s39, {k*32768}")
        a(f"buffer_store_dwordx2 v[{24+2*k}:{25+2*k}], v13, s[24:27], s38 offen")
    a("s_cmp_lg_u32 s20, 0")
    a("s_cbranch_scc1 K3_END")
    a("v_add_f32 v30, v160, v161")
    for i in range(2, 8):
        a(f"v_add_f32 v30, v30, v{160+i}")
    row_ror_sum(a, [30])
    a("v_mov_b32 v31, 0")
    a("s_lshl_b32 s39, s3, 2")
    a(f"s_add_u32 s39, s39, 0x{WS_SW:x}")
    a("buffer_store_dword v30, v31, s[24:27], s39 offen")
    a.lab("K3_END")
    a("s_endpgm")
    return name, 236


def top2_merge(a, k1, k2, o1, o2, t):
    a(f"v_min_u32 v{t}, v{k1}, v{o1}")
    a(f"v_max_u32 v{k1}, v{k1}, v{o1}")
    a(f"v_max_u32 v{k2}, v{k2}, v{o2}")
    a(f"v_max_u32 v{k2}, v{k2}, v{t}")


def dpp_sum(a, regs, shifts):
    for sh in shifts:
        a.nop(2)
        for r in regs:
            a(f"v_add_f32_dpp v{r}, v{r}, v{r} row_ror:{sh} row_mask:0xf bank_mask:0xf")


def gen_k4a(a):
    name = "k4a_ffn1_kernel"
    kernel_head(a, name)
    a("s_cmp_ge_u32 s2, 184")
    a("s_cbranch_scc1 K4A_END")
    a("s_load_dwordx2 s[4:5], s[0:1], 40")
    a("s_load_dwordx2 s[6:7], s[0:1], 48")
    a("s_load_dwordx2 s[8:9], s[0:1], 80")
    a("s_load_dwordx2 s[10:11], s[0:1], 56")
    a("s_load_dwordx2 s[44:45], s[0:1], 32")
    a("s_load_dwordx2 s[46:47], s[0:1], 64")
    a("v_lshrrev_b32 v1, 6, v0")
    a("v_and_b32 v2, 63, v0")
    a.nop(1)
    a("v_readfirstlane_b32 s21, v1")
    a("v_lshlrev_b32 v5, 4, v2")
    a("s_waitcnt lgkmcnt(0)")
    a.srd(24, 8, WS_SIZE)
    a("s_cmp_lt_u32 s2, 56")
    a("s_cbranch_scc1 K4A_FFN")
    a.srd(28, 46, 2048 * 512 * 2)
    a("s_sub_u32 s22, s2, 56")
    a("s_lshl_b32 s22, s22, 4")
    a("s_add_u32 s22, s22, s21")
    a("s_lshl_b32 s23, s22, 10")
    a(f"s_add_u32 s52, s23, 0x{WS_H:x}")
    a("buffer_load_dwordx4 v[32:35], v5, s[24:27], s52 offen")
    a("s_lshl_b32 s53, s22, 2")
    a(f"s_add_u32 s53, s53, 0x{WS_PS:x}")
    a("s_add_u32 s32, s8, s53")
    a("s_addc_u32 s33, s9, 0")
    for k in range(2):
        for cb in range(4):
            a(f"s_load_dword s{56+4*k+cb}, s[32:33], {k*32768+cb*8192}")
    a("s_waitcnt lgkmcnt(0)")
    for k in range(2):
        a(f"v_mov_b32 v{8+k}, s{56+4*k}")
        for cb in range(1, 4):
            a(f"v_add_f32 v{8+k}, s{56+4*k+cb}, v{8+k}")
    ln_consts(a, 8, 9, 10)
    a("s_waitcnt vmcnt(0)")
    T = 48
    for jp in range(4):
        ln_pair(a, 32 + jp, 8, 9, 10, T, T + 10)
        a(f"v_add_f32 v{T}, v{T}, v{T+7}")
        a(f"v_add_f32 v{T+1}, v{T+1}, v{T+8}")
        a(f"v_cvt_pk_bf16_f32 v{36+jp}, v{T}, v{T+1}")
    a("buffer_store_dwordx4 v[36:39], v5, s[28:31], s23 offen")
    a("s_branch K4A_END")
    a.lab("K4A_FFN")
    a.srd(12, 4, 512 * 1792 * 2)
    a.srd(16, 6, 512 * 1792 * 2)
    a.srd(28, 10, 1792 * 512 * 2)
    a.srd(48, 44, 1024)
    PSV = 32
    a("v_lshlrev_b32 v20, 3, v0")
    for k in range(3):
        for cb in range(4):
            a(f"s_mov_b32 s38, 0x{WS_PS + k*32768 + cb*8192:x}")
            a(f"buffer_load_dwordx2 {vr(PSV+8*k+2*cb,2)}, v20, s[24:27], s38 offen")
    a(f"s_add_u32 s32, s8, 0x{WS_SW:x}")
    a("s_addc_u32 s33, s9, 0")
    a("s_load_dwordx4 s[56:59], s[32:33], 0")
    a("v_lshrrev_b32 v7, 2, v2")
    a("v_mul_u32_u24 v7, 0xe00, v7")
    a("v_and_b32 v3, 3, v2")
    a("v_lshl_add_u32 v7, v3, 4, v7")
    a("s_lshl_b32 s22, s2, 6")
    a("s_mul_i32 s23, s21, 114688")
    a("s_add_u32 s22, s22, s23")
    a("s_lshl_b32 s23, s21, 11")
    for i in range(2):
        for mi in range(2):
            a(f"s_add_u32 s36, s23, {mi*32768 + i*1024}")
            a("s_mov_b32 m0, s36")
            a(f"s_add_u32 s37, s22, {i*57344}")
            a(f"buffer_load_dwordx4 v7, s[{12+4*mi}:{15+4*mi}], s37 offen lds")
    a("s_lshl_b32 s22, s2, 15")
    a("s_add_u32 s22, s22, s23")
    for i in range(2):
        a(f"s_add_u32 s36, s23, {65536 + i*1024}")
        a("s_mov_b32 m0, s36")
        a(f"s_add_u32 s37, s22, {i*1024}")
        a("buffer_load_dwordx4 v5, s[28:31], s37 offen lds")
    a("v_and_b32 v4, 255, v0")
    a("v_lshlrev_b32 v6, 2, v4")
    a("buffer_load_dword v60, v6, s[48:51], 0 offen")
    a("v_mov_b32 v8, 0")
    a("v_mov_b32 v9, 0")
    a("v_mov_b32 v10, 100352")
    a("ds_write_b64 v10, v[8:9]")
    a("ds_write_b64 v10, v[8:9] offset:8")
    a(";@T 0")
    a("s_waitcnt vmcnt(7) lgkmcnt(0)")
    a(";@T 1")
    a("v_mov_b32 v8, s56")
    for q in range(1, 4):
        a(f"v_add_f32 v8, s{56+q}, v8")
    a("v_lshlrev_b32 v21, 1, v0")
    a("v_sub_u32 v21, 0x7ff, v21")
    for i in range(2):
        for k in range(3):
            a(f"v_add_f32 v{12+k}, v{PSV+8*k+i}, v{PSV+8*k+2+i}")
            a(f"v_add_f32 v15, v{PSV+8*k+4+i}, v{PSV+8*k+6+i}")
            a(f"v_add_f32 v{12+k}, v{12+k}, v15")
        a("v_mul_f32 v12, 0x3b000000, v12")
        a("v_mul_f32 v13, 0x3b000000, v13")
        a("v_fma_f32 v13, -v12, v12, v13")
        a(f"v_add_f32 v13, 0x{f32bits(1e-5):08x}, v13")
        a("v_rsq_f32 v13, v13")
        a("v_fma_f32 v14, -v12, v8, v14")
        a("v_mul_f32 v14, v14, v13")
        a("v_cvt_pk_bf16_f32 v14, v14, v14")
        a("v_lshlrev_b32 v14, 16, v14")
        a("v_ashrrev_i32 v22, 31, v14")
        a("v_or_b32 v22, 0x80000000, v22")
        a("v_xor_b32 v14, v14, v22")
        a("v_and_b32 v14, 0xffff0000, v14")
        a(f"v_subrev_u32 v22, {i}, v21")
        a(f"v_or_b32 v{10+i}, v14, v22")
    a("v_max_u32 v12, v10, v11")
    a("v_min_u32 v11, v10, v11")
    a("v_mov_b32 v10, v12")
    for sh in (8, 4, 2, 1):
        a.nop(2)
        a(f"v_mov_b32_dpp v12, v10 row_ror:{sh} row_mask:0xf bank_mask:0xf")
        a(f"v_mov_b32_dpp v13, v11 row_ror:{sh} row_mask:0xf bank_mask:0xf")
        top2_merge(a, 10, 11, 12, 13, 22)
    a("v_lshrrev_b32 v22, 4, v0")
    a("v_lshlrev_b32 v22, 3, v22")
    a("ds_write_b64 v22, v[10:11] offset:0") if False else a("v_add_u32 v22, 100416, v22")
    a("ds_write_b64 v22, v[10:11]")
    a("s_waitcnt lgkmcnt(0)")
    a("s_barrier")
    a("s_cmp_ge_u32 s21, 8")
    a("s_cbranch_scc1 K4A_XDONE")
    a("v_lshlrev_b32 v22, 3, v2")
    a("v_add_u32 v22, 100416, v22")
    a("ds_read_b64 v[10:11], v22")
    a("s_waitcnt lgkmcnt(0)")
    for sh in (8, 4, 2, 1):
        a.nop(2)
        a(f"v_mov_b32_dpp v12, v10 row_ror:{sh} row_mask:0xf bank_mask:0xf")
        a(f"v_mov_b32_dpp v13, v11 row_ror:{sh} row_mask:0xf bank_mask:0xf")
        top2_merge(a, 10, 11, 12, 13, 22)
    a.nop(1)
    for q in range(4):
        a(f"v_readlane_b32 s{56+2*q}, v10, {16*q}")
        a(f"v_readlane_b32 s{57+2*q}, v11, {16*q}")
    a.nop(3)
    for q in range(1, 4):
        a(f"s_min_u32 s64, s56, s{56+2*q}")
        a(f"s_max_u32 s56, s56, s{56+2*q}")
        a(f"s_max_u32 s57, s57, s{57+2*q}")
        a("s_max_u32 s57, s57, s64")
    a("s_and_b32 s60, s56, 0x7ff")
    a("s_sub_u32 s60, 0x7ff, s60")
    a("s_and_b32 s61, s57, 0x7ff")
    a("s_sub_u32 s61, 0x7ff, s61")
    a(";@T 2")
    a("s_cmp_lt_u32 s21, 4")
    a("s_cselect_b32 s63, s60, s61")
    a("s_lshl_b32 s62, s63, 10")
    a(f"s_add_u32 s62, s62, 0x{WS_H:x}")
    a("buffer_load_dword v40, v6, s[24:27], s62 offen")
    a("s_lshl_b32 s62, s63, 2")
    a(f"s_add_u32 s62, s62, 0x{WS_PS:x}")
    a("s_add_u32 s32, s8, s62")
    a("s_addc_u32 s33, s9, 0")
    for k in range(2):
        for cb in range(4):
            a(f"s_load_dword s{64+4*k+cb}, s[32:33], {k*32768+cb*8192}")
    a("v_lshlrev_b32 v61, 16, v60")
    a("v_and_b32 v62, 0xffff0000, v60")
    a("v_lshlrev_b32 v23, 2, v0")
    a("v_add_u32 v23, 98304, v23")
    a("s_waitcnt lgkmcnt(0)")
    for k in range(2):
        a(f"v_mov_b32 v{8+k}, s{64+4*k}")
        for cb in range(1, 4):
            a(f"v_add_f32 v{8+k}, s{64+4*k+cb}, v{8+k}")
    ln_consts(a, 8, 9, 10)
    a("s_waitcnt vmcnt(0)")
    ln_pair(a, 40, 8, 9, 10, 24, 41)
    a("ds_write_b32 v23, v41")
    a("v_mul_f32 v16, v24, v61")
    a("v_fmac_f32 v16, v25, v62")
    dpp_sum(a, [16], (8, 4, 2, 1))
    a("v_lshrrev_b32 v22, 4, v0")
    a("v_lshlrev_b32 v22, 2, v22")
    a("v_add_u32 v22, 103104, v22")
    a("ds_write_b32 v22, v16")
    a.lab("K4A_XDONE")
    a(";@T 3")
    a("s_waitcnt vmcnt(0) lgkmcnt(0)")
    a("s_barrier")
    a("v_and_b32 v3, 31, v2")
    a("v_lshrrev_b32 v4, 5, v2")
    a("v_cmp_gt_u32 vcc, 2, v3")
    a("v_and_b32 v7, 15, v2")
    a("v_lshrrev_b32 v8, 2, v7")
    a("v_and_b32 v9, 3, v7")
    a("v_lshl_add_u32 v8, v4, 3, v8")
    a("v_bfe_u32 v7, v2, 4, 1")
    a("v_lshlrev_b32 v7, 5, v7")
    a("v_lshl_add_u32 v7, v9, 3, v7")
    a("v_mov_b32 v11, 100352")
    a("s_cmp_ge_u32 s21, 8")
    a("s_cbranch_scc1 K4A_GDONE")
    a("s_and_b32 s36, s21, 1")
    a("s_lshr_b32 s37, s21, 1")
    a("s_lshl_b32 s38, s36, 15")
    a("s_lshl_b32 s39, s37, 13")
    a("s_add_u32 s38, s38, s39")
    a("v_lshl_add_u32 v12, v8, 6, v7")
    a("v_add_u32 v12, s38, v12")
    a("s_lshl_b32 s39, s37, 8")
    a("s_add_u32 s39, s39, 98304")
    a("v_lshlrev_b32 v13, 10, v3")
    a("v_lshl_add_u32 v13, v4, 4, v13")
    a("v_add_u32 v13, s39, v13")
    a("v_mov_b32 v14, 32")
    a("v_cndmask_b32 v13, v11, v13, vcc")
    a("v_cndmask_b32 v14, 0, v14, vcc")
    for i in range(16):
        a(f"v_mov_b32 v{64+i}, 0")
    for s in range(8):
        a(f"ds_read_b128 {vr(32+4*(s&1),4)}, v13")
        a(f"ds_read_b64_tr_b16 {vr(40+4*(s&1),2)}, v12 offset:{s*1024}")
        a(f"ds_read_b64_tr_b16 {vr(42+4*(s&1),2)}, v12 offset:{s*1024+256}")
        a("v_add_u32 v13, v14, v13")
        a("s_waitcnt lgkmcnt(0)")
        a(f"v_mfma_f32_32x32x16_bf16 v[64:79], {vr(32+4*(s&1),4)}, {vr(40+4*(s&1),4)}, v[64:79]")
    a.nop(16)
    a("s_lshl_b32 s38, s37, 9")
    a("s_lshl_b32 s39, s36, 8")
    a("s_add_u32 s38, s38, s39")
    a("s_add_u32 s38, s38, 100928")
    a("v_lshlrev_b32 v15, 2, v3")
    a("v_add_u32 v15, s38, v15")
    a("v_cmp_eq_u32 s[66:67], 0, v4")
    a("s_and_saveexec_b64 s[68:69], s[66:67]")
    a("ds_write_b32 v15, v64")
    a("ds_write_b32 v15, v65 offset:128")
    a("s_mov_b64 exec, s[68:69]")
    a.lab("K4A_GDONE")
    a("s_waitcnt lgkmcnt(0)")
    a("s_barrier")
    a("s_cmp_lg_u32 s21, 0")
    a("s_cbranch_scc1 K4A_ADONE")
    a("v_lshlrev_b32 v12, 2, v2")
    a("v_add_u32 v12, 100928, v12")
    for kq in range(4):
        a(f"ds_read_b32 v{32+kq}, v12 offset:{512*kq}")
        a(f"ds_read_b32 v{36+kq}, v12 offset:{512*kq+256}")
    a("s_waitcnt lgkmcnt(0)")
    for b in (32, 36):
        a(f"v_add_f32 v{b}, v{b}, v{b+1}")
        a(f"v_add_f32 v{b+2}, v{b+2}, v{b+3}")
        a(f"v_add_f32 v{b}, v{b}, v{b+2}")
    bf16_round_to_f32(a, 13, 32)
    bf16_round_to_f32(a, 15, 36)
    a(f"v_mul_f32 v14, 0x{f32bits(-math.log2(math.e)):08x}, v13")
    a("v_exp_f32 v14, v14")
    a.nop(1)
    a("v_add_f32 v14, 1.0, v14")
    a("v_rcp_f32 v16, v14")
    a.nop(1)
    a("v_mul_f32 v17, v13, v16")
    a("v_fma_f32 v18, -v17, v14, v13")
    a("v_fmac_f32 v17, v18, v16")
    bf16_round_to_f32(a, 17, 17)
    a("v_mul_f32 v17, v17, v15")
    a("v_cvt_pk_bf16_f32 v17, v17, v17")
    a("v_lshlrev_b32 v12, 1, v2")
    a("v_add_u32 v12, 102976, v12")
    a("ds_write_b16 v12, v17")
    a.lab("K4A_ADONE")
    a(";@T 4")
    a("s_waitcnt lgkmcnt(0)")
    a("s_barrier")
    a("s_lshl_b32 s38, s21, 6")
    a("s_add_u32 s38, s38, 65536")
    a("v_lshl_add_u32 v12, v8, 10, v7")
    a("v_add_u32 v12, s38, v12")
    a("v_lshlrev_b32 v13, 6, v3")
    a("v_lshl_add_u32 v13, v4, 4, v13")
    a("v_add_u32 v13, 102976, v13")
    a("v_add_u32 v14, 32, v13")
    a("v_cndmask_b32 v13, v11, v13, vcc")
    a("v_cndmask_b32 v14, v11, v14, vcc")
    for s in range(2):
        a(f"ds_read_b128 {vr(32+4*s,4)}, v{13+s}")
        a(f"ds_read_b64_tr_b16 {vr(40+4*s,2)}, v12 offset:{s*16384}")
        a(f"ds_read_b64_tr_b16 {vr(42+4*s,2)}, v12 offset:{s*16384+4096}")
    a("s_waitcnt lgkmcnt(0)")
    a("v_mfma_f32_32x32x16_bf16 v[64:79], v[32:35], v[40:43], 0")
    a("v_mfma_f32_32x32x16_bf16 v[64:79], v[36:39], v[44:47], v[64:79]")
    a("v_lshlrev_b32 v15, 2, v3")
    a("s_lshl_b32 s36, s2, 12")
    a("s_lshl_b32 s37, s21, 7")
    a("s_add_u32 s36, s36, s37")
    a(f"s_add_u32 s36, s36, 0x{WS_YP:x}")
    a("v_cmp_eq_u32 s[66:67], 0, v4")
    a.nop(16)
    a("s_and_saveexec_b64 s[68:69], s[66:67]")
    a("buffer_store_dword v64, v15, s[24:27], s36 offen")
    a("buffer_store_dword v65, v15, s[24:27], s36 offen offset:2048")
    a("s_mov_b64 exec, s[68:69]")
    a("s_cmp_lg_u32 s2, 0")
    a("s_cbranch_scc1 K4A_END")
    a("s_cmp_lg_u32 s21, 0")
    a("s_cbranch_scc1 K4A_END")
    a("v_lshlrev_b32 v9, 2, v2")
    a("v_add_u32 v9, 103104, v9")
    a("ds_read_b32 v16, v9")
    a("s_waitcnt lgkmcnt(0)")
    dpp_sum(a, [16], (8, 4, 2, 1))
    bf16_round_to_f32(a, 16, 16)
    a.nop(1)
    a("v_readlane_b32 s56, v16, 0")
    a("v_readlane_b32 s57, v16, 16")
    a.nop(2)
    a("v_mov_b32 v18, s56")
    a("v_mov_b32 v19, s57")
    a("v_mov_b32 v16, s60")
    a("v_mov_b32 v17, s61")
    a("v_mov_b32 v20, 0")
    a(f"s_mov_b32 s38, 0x{WS_SEL:x}")
    a("buffer_store_dwordx4 v[16:19], v20, s[24:27], s38 offen")
    a.lab("K4A_END")
    a("s_endpgm")
    return name, 80


def gen_k4b(a):
    name = "k4b_ffn2_kernel"
    kernel_head(a, name)
    a("s_cmp_ge_u32 s2, 16")
    a("s_cbranch_scc1 K4B_END")
    a("s_load_dwordx2 s[8:9], s[0:1], 80")
    a("s_load_dwordx2 s[10:11], s[0:1], 64")
    a("v_lshrrev_b32 v1, 6, v0")
    a("v_and_b32 v2, 63, v0")
    a.nop(1)
    a("v_readfirstlane_b32 s21, v1")
    a("s_waitcnt lgkmcnt(0)")
    a.srd(24, 8, WS_SIZE)
    a.srd(28, 10, 2048 * 512 * 2)
    a(f"s_add_u32 s32, s8, 0x{WS_SEL:x}")
    a("s_addc_u32 s33, s9, 0")
    a("s_load_dwordx4 s[60:63], s[32:33], 0")
    a("v_lshlrev_b32 v5, 2, v2")
    a("s_lshl_b32 s22, s2, 8")
    a("s_mul_i32 s23, s21, 57344")
    a("s_add_u32 s22, s22, s23")
    a(f"s_add_u32 s22, s22, 0x{WS_YP:x}")
    for p in range(14):
        a(f"buffer_load_dword v{32+p}, v5, s[24:27], s22 offen")
        a("s_add_u32 s22, s22, 4096")
    a("s_waitcnt lgkmcnt(0)")
    a("s_lshr_b32 s34, s2, 3")
    a("s_cmp_eq_u32 s34, 0")
    a("s_cselect_b32 s35, s60, s61")
    a("s_cselect_b32 s36, s62, s63")
    a("s_and_b32 s37, s2, 7")
    a("s_lshl_b32 s37, s37, 7")
    a("s_lshl_b32 s38, s35, 10")
    a("s_add_u32 s37, s37, s38")
    a("v_lshlrev_b32 v6, 1, v2")
    a(f"s_add_u32 s38, s37, 0x{WS_H:x}")
    a("buffer_load_ushort v20, v6, s[24:27], s38 offen")
    a("s_lshl_b32 s39, s35, 2")
    a(f"s_add_u32 s39, s39, 0x{WS_PS:x}")
    a("s_add_u32 s32, s8, s39")
    a("s_addc_u32 s33, s9, 0")
    for k in range(2):
        for cb in range(4):
            a(f"s_load_dword s{64+4*k+cb}, s[32:33], {k*32768+cb*8192}")
    a("s_waitcnt vmcnt(1)")
    for p in range(1, 14):
        a(f"v_add_f32 v32, v32, v{32+p}")
    a("v_lshlrev_b32 v7, 2, v0")
    a("ds_write_b32 v7, v32")
    a("s_waitcnt lgkmcnt(0)")
    a("s_barrier")
    a("s_cmp_lg_u32 s21, 0")
    a("s_cbranch_scc1 K4B_END")
    for w in range(4):
        a(f"ds_read_b32 v{32+w}, v5 offset:{256*w}")
    for k in range(2):
        a(f"v_mov_b32 v{8+k}, s{64+4*k}")
        for cb in range(1, 4):
            a(f"v_add_f32 v{8+k}, s{64+4*k+cb}, v{8+k}")
    ln_consts(a, 8, 9, 10)
    a("v_mov_b32 v23, s36")
    a(f"v_mul_f32 v24, 0x{f32bits(-math.log2(math.e)):08x}, v23")
    a("v_exp_f32 v24, v24")
    a.nop(1)
    a("v_add_f32 v24, 1.0, v24")
    a("v_rcp_f32 v25, v24")
    a.nop(1)
    a("v_fma_f32 v26, -v25, v24, 1.0")
    a("v_fmac_f32 v25, v26, v25")
    bf16_round_to_f32(a, 25, 25)
    a("s_waitcnt vmcnt(0) lgkmcnt(0)")
    for st in (2, 1):
        for k in range(st):
            a(f"v_add_f32 v{32+k}, v{32+k}, v{32+st+k}")
    bf16_round_to_f32(a, 32, 32)
    a("v_mul_f32 v32, v32, v25")
    bf16_round_to_f32(a, 32, 32)
    ln_pair(a, 20, 8, 9, 10, 50, 60)
    a("v_add_f32 v50, v50, v32")
    bf16_round_to_f32(a, 50, 50)
    a("v_add_f32 v50, v50, v57")
    a("v_cvt_pk_bf16_f32 v50, v50, v50")
    a("buffer_store_short v50, v6, s[28:31], s37 offen")
    a.lab("K4B_END")
    a("s_endpgm")
    return name, 64
```

```python
import math, struct, sys, os
EXP=os.environ.get('EXP','')

NAME = "sequential_preLN__softmax_full_mha__moe_arch_mod__prompt"

WS_QF = 0x000000
WS_KF = 0x200000
WS_VF = 0x400000
WS_O = 0x600000
WS_H = 0x800000
WS_LN2 = 0xA00000
WS_KN = 0xC00000
WS_R = 0xC40000
WS_ACT = 0xC50000
WS_SEL = 0xC60000
WS_SIZE = 0xE00000

CSCALE = 0.25 * math.log2(math.e)


def f32bits(x):
    return struct.unpack("<I", struct.pack("<f", x))[0]


class A:
    def __init__(self):
        self.l = []

    def __call__(self, s):
        self.l.append("    " + s)

    def lab(self, s):
        self.l.append(s + ":")

    def raw(self, s):
        self.l.append(s)

    def nop(self, n):
        while n > 0:
            k = min(n, 16)
            self(f"s_nop {k-1}")
            n -= k

    def srd(self, d, base, size, off=0):
        if off:
            self(f"s_add_u32 s{d}, s{base}, 0x{off:x}")
            self(f"s_addc_u32 s{d+1}, s{base+1}, 0")
        else:
            self(f"s_mov_b32 s{d}, s{base}")
            self(f"s_mov_b32 s{d+1}, s{base+1}")
        self(f"s_mov_b32 s{d+2}, 0x{size:x}")
        self(f"s_mov_b32 s{d+3}, 0x00020000")

    def text(self):
        return "\n".join(self.l) + "\n"


def vr(a, n):
    return f"v[{a}:{a+n-1}]"


def kernel_head(a, name):
    a.raw(f".globl {name}")
    a.raw(".p2align 8")
    a.raw(f".type {name},@function")
    a.lab(name)


def kd(name, vgpr, sgpr=102):
    acc = (vgpr + 3) // 4 * 4
    return f""".p2align 6
.amdhsa_kernel {name}
  .amdhsa_next_free_vgpr {vgpr}
  .amdhsa_next_free_sgpr {sgpr}
  .amdhsa_accum_offset {acc}
  .amdhsa_group_segment_fixed_size 0
  .amdhsa_kernarg_size 88
  .amdhsa_user_sgpr_count 2
  .amdhsa_user_sgpr_kernarg_segment_ptr 1
  .amdhsa_system_sgpr_workgroup_id_x 1
.end_amdhsa_kernel
"""


def bf16_round_to_f32(a, dst, src):
    a(f"v_cvt_pk_bf16_f32 v{dst}, v{src}, v{src}")
    a(f"v_lshlrev_b32 v{dst}, 16, v{dst}")


def xhalf_add(a, v, t, op="v_add_f32"):
    a(f"v_mov_b32 v{t}, v{v}")
    a.nop(2)
    a(f"v_permlane32_swap_b32 v{v}, v{t}")
    a.nop(2)
    a(f"{op} v{v}, v{v}, v{t}")


K1_LDS = 117248
def gen_k1(a):
    name = "k1_qkv_kernel"
    kernel_head(a, name)
    a("s_cmp_ge_u32 s2, 256")
    a("s_cbranch_scc1 K1_END")
    a("s_load_dwordx2 s[4:5], s[0:1], 0")
    a("s_load_dwordx2 s[6:7], s[0:1], 8")
    a("s_load_dwordx2 s[8:9], s[0:1], 80")
    a("s_and_b32 s3, s2, 15")
    a("s_lshr_b32 s20, s2, 4")
    a("v_lshrrev_b32 v1, 6, v0")
    a("v_and_b32 v2, 63, v0")
    a.nop(1)
    a("v_readfirstlane_b32 s58, v1")
    a("v_and_b32 v3, 31, v2")
    a("v_lshrrev_b32 v4, 5, v2")
    a.nop(2)
    a("s_and_b32 s21, s58, 3")
    ACC = 64
    BF = 32
    AFR = 112
    a("s_lshl_b32 s22, s20, 7")
    a("s_lshl_b32 s23, s21, 5")
    a("s_add_u32 s22, s22, s23")
    a("s_lshl_b32 s29, s21, 12")
    a("s_lshl_b32 s34, s21, 7")
    a("s_add_u32 s34, s34, 114688")
    a("s_lshr_b32 s59, s58, 2")
    a("s_cmp_eq_u32 s59, 1")
    a("s_cbranch_scc0 K1_NOTDMA")
    a("v_lshrrev_b32 v7, 3, v2")
    a("v_lshlrev_b32 v7, 10, v7")
    a("v_and_b32 v8, 7, v2")
    a("v_lshrrev_b32 v9, 4, v2")
    a("v_xor_b32 v10, v8, v9")
    a("v_lshl_add_u32 v5, v10, 4, v7")
    a("v_xor_b32 v10, 4, v10")
    a("v_lshl_add_u32 v6, v10, 4, v7")
    for b in range(3):
        a(f"v_add_u32 v7, {64*b}, v2")
        a("v_mul_u32_u24 v8, 0xaaab, v7")
        a("v_lshrrev_b32 v8, 19, v8")
        a("v_mul_u32_u24 v9, 12, v8")
        a("v_sub_u32 v9, v7, v9")
        a("v_mul_u32_u24 v8, 0xc00, v8")
        a(f"v_lshl_add_u32 v{10+b}, v9, 4, v8")
    a("s_lshl_b32 s28, s22, 10")
    a("s_mul_i32 s30, s21, 49152")
    a("s_mul_i32 s31, s3, 192")
    a("s_add_u32 s30, s30, s31")
    a("s_mul_i32 s31, s21, 3072")
    a("s_add_u32 s31, s31, 65536")
    a("s_waitcnt lgkmcnt(0)")
    a.srd(12, 4, 2048 * 512 * 2)
    a.srd(16, 6, 512 * 1536 * 2)

    def dma_dyn():
        a("s_and_b32 s55, s54, 3")
        a("s_lshl_b32 s56, s55, 14")
        a("s_add_u32 s56, s56, s29")
        a("s_lshl_b32 s57, s54, 7")
        a("s_add_u32 s57, s57, s28")
        for i in range(4):
            a("s_mov_b32 m0, s56")
            a("s_add_u32 s56, s56, 1024")
            a(f"buffer_load_dwordx4 v{5+(i&1)}, s[12:15], s57 offen lds")
            a("s_add_u32 s57, s57, 8192")
        a("s_mul_i32 s56, s55, 12288")
        a("s_add_u32 s56, s56, s31")
        a("s_mul_i32 s57, s54, 196608")
        a("s_add_u32 s57, s57, s30")
        for b in range(3):
            a("s_mov_b32 m0, s56")
            a("s_add_u32 s56, s56, 1024")
            a(f"buffer_load_dwordx4 v{10+b}, s[16:19], s57 offen lds")
    a("s_mov_b32 s54, 0")
    a.lab("K1_HPRE")
    dma_dyn()
    a("s_add_u32 s54, s54, 1")
    a("s_cmp_lt_u32 s54, 3")
    a("s_cbranch_scc1 K1_HPRE")
    a("s_mov_b32 s50, 0")
    a.lab("K1_HLOOP")
    a("s_cmp_lt_u32 s50, 6")
    a("s_cbranch_scc1 K1_HW14")
    a("s_cmp_eq_u32 s50, 6")
    a("s_cbranch_scc1 K1_HW7")
    a("s_waitcnt vmcnt(0)")
    a.lab("K1_HW7")
    a("s_waitcnt vmcnt(7)")
    a.lab("K1_HW14")
    a("s_waitcnt vmcnt(14)")
    a("s_barrier")
    a("s_cmp_ge_u32 s50, 5")
    a("s_cbranch_scc1 K1_HNODMA")
    a("s_add_u32 s54, s50, 3")
    dma_dyn()
    a.lab("K1_HNODMA")
    a("s_add_u32 s50, s50, 1")
    a("s_cmp_lt_u32 s50, 8")
    a("s_cbranch_scc1 K1_HLOOP")
    a("s_branch K1_END")
    a.lab("K1_NOTDMA")
    a("v_lshrrev_b32 v7, 1, v3")
    a("v_and_b32 v7, 7, v7")
    a("v_lshlrev_b32 v8, 7, v3")
    a("v_add_u32 v8, s29, v8")
    for sp in range(4):
        a(f"v_add_u32 v9, {2*sp}, v4")
        a("v_xor_b32 v9, v9, v7")
        a(f"v_lshl_add_u32 v{120+sp}, v9, 4, v8")
    a("v_and_b32 v7, 15, v2")
    a("v_lshrrev_b32 v8, 2, v7")
    a("v_and_b32 v9, 3, v7")
    a("v_lshl_add_u32 v8, v4, 3, v8")
    a("v_mul_u32_u24 v8, 192, v8")
    a("v_lshrrev_b32 v7, 4, v2")
    a("v_and_b32 v7, 1, v7")
    a("v_lshlrev_b32 v7, 5, v7")
    a("v_lshl_add_u32 v7, v9, 3, v7")
    a("v_add_u32 v13, v8, v7")
    a("v_add_u32 v13, 0x10000, v13")
    for i in range(48):
        a(f"v_mov_b32 v{ACC+i}, 0")
    a("s_cmp_eq_u32 s59, 0")
    a("s_cbranch_scc1 K1_COMPUTE")
    for i in range(124, 132):
        a(f"v_mov_b32 v{i}, 0")
    for i in range(132, 136):
        a(f"v_mov_b32 v{i}, 0x3f803f80")
    a("s_mul_i32 s60, s21, 3072")
    a("v_add_u32 v13, s60, v13")
    a("s_mov_b32 s50, 0")
    a.lab("K1_SLOOP")
    a("s_and_b32 s51, s50, 3")
    a("s_lshl_b32 s52, s51, 14")
    a("s_mul_i32 s53, s51, 12288")
    for sp in range(4):
        a(f"v_add_u32 v{136+sp}, s52, v{120+sp}")
    a("v_add_u32 v14, s53, v13")
    a("s_barrier")
    for sp in range(4):
        a(f"ds_read_b128 {vr(32+4*sp,4)}, v{136+sp}")
    for j in range(3):
        for u in range(2):
            a(f"ds_read_b64_tr_b16 {vr(48+4*j+2*u,2)}, v14 offset:{u*768+j*64}")
    for i in range(16):
        if (i & 3) == 0:
            a(f"s_waitcnt lgkmcnt({9-(i>>2)})")
        t = 140 + 2 * (i & 3)
        a(f"v_lshlrev_b32 v{t}, 16, v{32+i}")
        a(f"v_and_b32 v{t+1}, 0xffff0000, v{32+i}")
        a(f"v_add_f32 v{124+(i&1)}, v{124+(i&1)}, v{t}")
        a(f"v_add_f32 v{126+(i&1)}, v{126+(i&1)}, v{t+1}")
        a(f"v_fmac_f32 v{128+(i&1)}, v{t}, v{t}")
        a(f"v_fmac_f32 v{130+(i&1)}, v{t+1}, v{t+1}")
    a("s_waitcnt lgkmcnt(0)")
    for j in range(3):
        a(f"v_mfma_f32_32x32x16_bf16 {vr(ACC+16*j,16)}, v[132:135], {vr(48+4*j,4)}, {vr(ACC+16*j,16)}")
    a("s_add_u32 s50, s50, 1")
    a("s_cmp_lt_u32 s50, 8")
    a("s_cbranch_scc1 K1_SLOOP")
    a("v_add_f32 v16, v124, v125")
    a("v_add_f32 v17, v126, v127")
    a("v_add_f32 v18, v128, v129")
    a("v_add_f32 v19, v130, v131")
    a("v_add_f32 v16, v16, v17")
    a("v_add_f32 v18, v18, v19")
    xhalf_add(a, 16, 17)
    xhalf_add(a, 18, 19)
    a("v_mul_f32 v16, 0x3b000000, v16")
    a("v_mul_f32 v18, 0x3b000000, v18")
    a("v_fma_f32 v18, -v16, v16, v18")
    a("v_max_f32 v18, 0, v18")
    bf16_round_to_f32(a, 16, 16)
    bf16_round_to_f32(a, 18, 18)
    a(f"v_add_f32 v18, 0x{f32bits(1e-5):08x}, v18")
    bf16_round_to_f32(a, 18, 18)
    a("v_sqrt_f32 v18, v18")
    a.nop(1)
    bf16_round_to_f32(a, 18, 18)
    a("v_rcp_f32 v18, v18")
    a("v_lshlrev_b32 v7, 2, v3")
    a("v_add_u32 v9, s34, v7")
    a("ds_write_b32 v9, v18")
    a("ds_write_b32 v9, v16 offset:2048")
    a("s_mul_i32 s35, s21, 384")
    a("s_add_u32 s35, s35, 115200")
    a("v_add_u32 v8, s35, v7")
    for j in range(3):
        a(f"ds_write_b32 v8, v{ACC+16*j} offset:{128*j}")
    a("s_waitcnt lgkmcnt(0)")
    a("s_barrier")
    a("s_branch K1_END")
    a.lab("K1_COMPUTE")
    a("v_cmp_eq_u32 vcc, 0, v4")
    a("s_waitcnt lgkmcnt(0)")
    a.srd(24, 8, WS_SIZE)
    a("s_cmp_lt_u32 s3, 10")
    a("s_cbranch_scc1 K1_P0")
    a("s_cmp_eq_u32 s3, 10")
    a("s_cbranch_scc1 K1_P1")
    a("s_branch K1_P2")

    def reads(sp, buf):
        a(f"ds_read_b128 {vr(AFR+4*buf,4)}, v{124+sp}")
        for j in range(3):
            for u in range(2):
                a(f"ds_read_b64_tr_b16 {vr(BF+12*buf+4*j+2*u,2)}, v14 offset:{sp*3072+u*768+j*64}")

    for pi, pat in enumerate([("S", "S", "S"), ("S", "S", "N"), ("N", "N", "N")]):
        a.lab(f"K1_P{pi}")
        a("s_mov_b32 s50, 0")
        a.lab(f"K1_P{pi}_LOOP")
        a("s_and_b32 s51, s50, 3")
        a("s_lshl_b32 s52, s51, 14")
        a("s_mul_i32 s53, s51, 12288")
        for sp in range(4):
            a(f"v_add_u32 v{124+sp}, s52, v{120+sp}")
        a("v_add_u32 v14, s53, v13")
        a(";@TC 0")
        a("s_barrier")
        a(";@TC 1")
        reads(0, 0)
        for sp in range(4):
            if sp < 3:
                reads(sp + 1, (sp + 1) & 1)
                a("s_waitcnt lgkmcnt(7)")
            else:
                a("s_waitcnt lgkmcnt(0)")
            bb = BF + 12 * (sp & 1)
            af = AFR + 4 * (sp & 1)
            for j in range(3):
                xa = vr(af, 4)
                wb = vr(bb + 4 * j, 4)
                acc = vr(ACC + 16 * j, 16)
                if pat[j] == "S":
                    a(f"v_mfma_f32_32x32x16_bf16 {acc}, {wb}, {xa}, {acc}")
                else:
                    a(f"v_mfma_f32_32x32x16_bf16 {acc}, {xa}, {wb}, {acc}")
        a("s_add_u32 s50, s50, 1")
        a("s_cmp_lt_u32 s50, 8")
        a(f"s_cbranch_scc1 K1_P{pi}_LOOP")
        a(";@T 2")
        a("v_lshlrev_b32 v7, 2, v3")
        a("v_add_u32 v9, s34, v7")
        a("v_add_u32 v7, 115200, v7")
        a("s_barrier")
        for j in range(3):
            for w in range(4):
                a(f"ds_read_b32 v{128+4*j+w}, v7 offset:{384*w+128*j}")
        a("ds_read_b32 v18, v9")
        a("ds_read_b32 v16, v9 offset:2048")
        a("s_waitcnt lgkmcnt(0)")
        for j in range(3):
            a(f"v_add_f32 v{128+4*j}, v{128+4*j}, v{129+4*j}")
            a(f"v_add_f32 v{130+4*j}, v{130+4*j}, v{131+4*j}")
            a(f"v_add_f32 v{20+j}, v{128+4*j}, v{130+4*j}")
        a("v_sub_f32 v17, 0, v16")
        a("v_cvt_pk_bf16_f32 v24, v17, v17")
        a("v_cndmask_b32 v24, 0, v24, vcc")
        a("v_mov_b32 v25, 0")
        a("v_mov_b32 v26, 0")
        a("v_mov_b32 v27, 0")
        for j in range(3):
            bf16_round_to_f32(a, 56, 20 + j)
            a(f"v_sub_f32 v57, v{20+j}, v56")
            a("v_cvt_pk_bf16_f32 v28, v56, v57")
            a("v_cndmask_b32 v28, 0, v28, vcc")
            a("v_mov_b32 v29, 0")
            a("v_mov_b32 v30, 0")
            a("v_mov_b32 v31, 0")
            a.nop(2)
            acc = vr(ACC + 16 * j, 16)
            if pat[j] == "S":
                a(f"v_mfma_f32_32x32x16_bf16 {acc}, v[28:31], v[24:27], {acc}")
            else:
                a(f"v_mfma_f32_32x32x16_bf16 {acc}, v[24:27], v[28:31], {acc}")
            a.nop(4)
        a.nop(16)
        a(";@T 3")
        a("s_lshr_b32 s36, s22, 5")
        for j in range(3):
            acc = ACC + 16 * j
            a("s_mul_i32 s40, s3, 96")
            a(f"s_add_u32 s40, s40, {32*j}")
            a("s_lshr_b32 s41, s40, 9")
            a("s_and_b32 s42, s40, 511")
            a("s_lshr_b32 s42, s42, 4")
            if pat[j] == "S":
                a("s_cmp_eq_u32 s41, 0")
                a(f"s_cselect_b32 s43, 0x{f32bits(CSCALE):08x}, 1.0")
                a("v_mul_f32 v56, s43, v18")
                for i in range(16):
                    a(f"v_mul_f32 v{acc+i}, v{acc+i}, v56")
                a("s_lshl_b32 s44, s41, 21")
                a("s_lshl_b32 s45, s42, 16")
                a("s_add_u32 s44, s44, s45")
                a("s_lshl_b32 s45, s36, 10")
                a("s_add_u32 s44, s44, s45")
                a("s_add_u32 s45, s44, 0x10000")
                a("v_lshlrev_b32 v57, 9, v4")
                a("v_lshl_add_u32 v57, v3, 4, v57")
                for i in range(8):
                    a(f"v_cvt_pk_bf16_f32 v{32+i}, v{acc+2*i}, v{acc+2*i+1}")
                a("buffer_store_dwordx4 v[32:35], v57, s[24:27], s44 offen")
                a("buffer_store_dwordx4 v[36:39], v57, s[24:27], s45 offen")
                a("s_cmp_eq_u32 s41, 1")
                a(f"s_cbranch_scc0 K1_P{pi}_NK{j}")
                a(f"v_mul_f32 v58, v{acc}, v{acc}")
                a(f"v_mul_f32 v59, v{acc+8}, v{acc+8}")
                for i in range(1, 8):
                    a(f"v_fmac_f32 v58, v{acc+i}, v{acc+i}")
                    a(f"v_fmac_f32 v59, v{acc+8+i}, v{acc+8+i}")
                xhalf_add(a, 58, 60)
                xhalf_add(a, 59, 60)
                a("v_add_u32 v60, s22, v3")
                a("v_lshlrev_b32 v60, 2, v60")
                a("s_lshl_b32 s46, s42, 13")
                a(f"s_add_u32 s46, s46, 0x{WS_KN:x}")
                a("s_add_u32 s47, s46, 8192")
                a("buffer_store_dword v58, v60, s[24:27], s46 offen")
                a("buffer_store_dword v59, v60, s[24:27], s47 offen")
                a.lab(f"K1_P{pi}_NK{j}")
                a.nop(2)
            else:
                a("v_lshlrev_b32 v57, 4, v4")
                a("v_add_u32 v57, s34, v57")
                for jj in range(4):
                    a(f"ds_read_b128 {vr(40+4*jj,4)}, v57 offset:{32*jj}")
                a("s_waitcnt lgkmcnt(0)")
                for i in range(16):
                    a(f"v_mul_f32 v{acc+i}, v{acc+i}, v{40+i}")
                a("s_lshl_b32 s45, s42, 16")
                a(f"s_add_u32 s44, s45, 0x{WS_VF:x}")
                a("s_lshl_b32 s45, s36, 10")
                a("s_add_u32 s44, s44, s45")
                a("v_lshrrev_b32 v57, 4, v3")
                a("v_lshlrev_b32 v57, 16, v57")
                a("v_lshl_add_u32 v57, v4, 8, v57")
                a("v_and_b32 v58, 15, v3")
                a("v_lshl_add_u32 v57, v58, 4, v57")
                for i in range(8):
                    a(f"v_cvt_pk_bf16_f32 v{32+i}, v{acc+2*i}, v{acc+2*i+1}")
                a("buffer_store_dwordx4 v[32:35], v57, s[24:27], s44 offen")
                a("buffer_store_dwordx4 v[36:39], v57, s[24:27], s44 offen offset:512")
                a.nop(2)
        a("s_branch K1_END")
    a.lab("K1_END")
    a("s_endpgm")
    return name, 152


K2_LDS = 139328
def gen_k2(a):
    name = "k2_attn_kernel"
    kernel_head(a, name)
    a("s_cmp_ge_u32 s2, 256")
    a("s_cbranch_scc1 K2_END")
    a("s_load_dwordx2 s[8:9], s[0:1], 80")
    a("s_and_b32 s3, s2, 31")
    a("s_lshr_b32 s20, s2, 5")
    a("v_lshrrev_b32 v1, 6, v0")
    a("v_and_b32 v2, 63, v0")
    a.nop(1)
    a("v_readfirstlane_b32 s21, v1")
    a("v_and_b32 v3, 31, v2")
    a("v_lshrrev_b32 v4, 5, v2")
    a("s_lshl_b32 s22, s3, 16")
    a("v_lshlrev_b32 v5, 4, v2")
    QF = 8
    a("s_lshl_b32 s23, s20, 3")
    a("s_add_u32 s23, s23, s21")
    a("s_lshl_b32 s28, s23, 10")
    a("s_add_u32 s28, s28, s22")
    a("v_lshlrev_b32 v6, 9, v4")
    a("v_lshl_add_u32 v6, v3, 4, v6")
    a("s_lshl_b32 s33, s21, 10")
    a("s_lshl_b32 s29, s3, 13")
    a(f"s_add_u32 s29, s29, 0x{WS_KN:x}")
    a("s_add_u32 s29, s29, s33")
    a(f"s_add_u32 s31, s22, 0x{WS_KF:x}")
    a(f"s_add_u32 s32, s22, 0x{WS_VF:x}")
    a("s_add_u32 s31, s31, s33")
    a("s_add_u32 s32, s32, s33")
    a("s_waitcnt lgkmcnt(0)")
    a.srd(24, 8, WS_SIZE)
    KNV = 64

    def chunk_dma():
        a("s_add_u32 s34, s33, s44")
        a("s_mov_b32 m0, s34")
        a("s_add_u32 s35, s31, s44")
        a("buffer_load_dwordx4 v5, s[24:27], s35 offen lds")
        a("s_add_u32 s34, s34, 65536")
        a("s_mov_b32 m0, s34")
        a("s_add_u32 s35, s32, s44")
        a("buffer_load_dwordx4 v5, s[24:27], s35 offen lds")
    a(f"buffer_load_dwordx4 {vr(KNV,4)}, v5, s[24:27], s29 offen")
    a(f"buffer_load_dwordx4 {vr(QF,4)}, v6, s[24:27], s28 offen")
    a("s_mov_b32 s44, 0")
    chunk_dma()
    a("s_mov_b32 s44, 8192")
    chunk_dma()
    a("v_lshlrev_b32 v7, 4, v0")
    a("v_add_u32 v7, 0x20000, v7")
    for i in range(4):
        a(f"v_mov_b32 v{24+i}, 0x3f803f80")
    a("ds_write_b128 v7, v[24:27]")
    a("v_and_b32 v17, 15, v3")
    a("v_lshlrev_b32 v15, 8, v4")
    a("v_lshl_add_u32 v15, v17, 4, v15")
    a("v_cmp_gt_u32 vcc, 16, v3")
    a("v_add_u32 v18, 0x10000, v15")
    a("v_add_u32 v19, 0x20000, v15")
    a("v_mov_b32 v16, 0x1000")
    a.nop(1)
    a("v_cndmask_b32 v21, v19, v18, vcc")
    a("v_cndmask_b32 v16, 0, v16, vcc")
    a("v_mov_b32 v20, v6")
    a(";@T 0")
    a("s_waitcnt vmcnt(5)")
    a(";@T 1")
    a(f"v_max3_f32 v17, v{KNV}, v{KNV+1}, v{KNV+2}")
    a(f"v_max_f32 v17, v17, v{KNV+3}")
    for sh in (8, 4, 2, 1):
        a.nop(2)
        a(f"v_max_f32_dpp v17, v17, v17 row_ror:{sh} row_mask:0xf bank_mask:0xf")
    a.nop(2)
    a("v_readlane_b32 s36, v17, 0")
    a("v_readlane_b32 s37, v17, 16")
    a("v_readlane_b32 s38, v17, 32")
    a("v_readlane_b32 s39, v17, 48")
    a.nop(2)
    a("v_mov_b32 v17, s36")
    a("v_max_f32 v17, s37, v17")
    a("v_max_f32 v17, s38, v17")
    a("v_max_f32 v17, s39, v17")
    a("s_lshl_b32 s36, s21, 2")
    a("s_add_u32 s36, s36, 139264")
    a("v_mov_b32 v18, s36")
    a("ds_write_b32 v18, v17")
    a("s_waitcnt vmcnt(4)")
    a(f"v_dot2_f32_bf16 v18, v{QF}, v{QF}, 0")
    for i in range(1, 4):
        a(f"v_dot2_f32_bf16 v18, v{QF+i}, v{QF+i}, v18")
    a.nop(3)
    xhalf_add(a, 18, 19)
    NEGM = 32
    S0 = 48
    S1 = 64
    OA = 80
    P = 96
    KB = 104
    VB = 112
    a("s_mov_b32 s40, 0")
    a("s_mov_b32 s42, 10")
    a("v_mov_b32 v19, 139264")
    a(";@T 2")
    a("s_waitcnt vmcnt(2) lgkmcnt(0)")
    a("s_barrier")
    a(";@T 3")
    a("ds_read_b128 v[24:27], v19")
    a("ds_read_b128 v[28:31], v19 offset:16")
    a("s_waitcnt lgkmcnt(0)")
    a("v_max3_f32 v17, v24, v25, v26")
    a("v_max3_f32 v17, v17, v27, v28")
    a("v_max3_f32 v17, v17, v29, v30")
    a("v_max_f32 v17, v17, v31")
    a("v_mul_f32 v17, v17, v18")
    a("v_sqrt_f32 v17, v17")
    a.nop(1)
    a("v_sub_f32 v17, 0, v17")
    a.lab("K2_MAIN")
    for i in range(16):
        a(f"v_mov_b32 v{NEGM+i}, v17")
    for i in range(16):
        a(f"v_mov_b32 v{OA+i}, 0")
    a("v_mov_b32 v14, v20")
    a("v_mov_b32 v15, v21")
    S = [S0, S1]
    a(f"ds_read_b128 {vr(KB,4)}, v14")
    a(f"ds_read_b128 {vr(KB+4,4)}, v14 offset:1024")
    a(f"ds_read_b128 {vr(VB,4)}, v15")
    a(f"ds_read_b128 {vr(VB+4,4)}, v15 offset:512")
    a("s_waitcnt lgkmcnt(3)")
    a(f"v_mfma_f32_32x32x16_bf16 {vr(S0,16)}, {vr(KB,4)}, {vr(QF,4)}, {vr(NEGM,16)}")
    a.nop(8)
    a("s_mov_b32 s41, 0")
    a.lab("K2_LOOP")
    a("s_cmp_lt_u32 s41, s42")
    a("s_cbranch_scc1 K2_HOOK")
    a.lab("K2_BODY")
    for u in range(4):
        cur = S[u & 1]
        nxt = S[(u + 1) & 1]
        kb_next = KB + 4 * ((u + 1) & 1)
        kb_free = KB + 4 * (u & 1)
        vb_cur = VB + 8 * (u & 1)
        vb_free = VB + 8 * ((u + 1) & 1)
        a("s_waitcnt lgkmcnt(2)")
        a(f"v_mfma_f32_32x32x16_bf16 {vr(nxt,16)}, {vr(kb_next,4)}, {vr(QF,4)}, {vr(NEGM,16)}")
        a(f"ds_read_b128 {vr(kb_free,4)}, v14 offset:{1024*(u+2)}")
        a(f"ds_read_b128 {vr(vb_free,4)}, v15 offset:{1024*(u+1)}")
        a(f"ds_read_b128 {vr(vb_free+4,4)}, v15 offset:{1024*(u+1)+512}")
        for i in range(8):
            a(f"v_exp_f32 v{cur+i}, v{cur+i}")
        a(f"v_exp_f32 v{cur+8}, v{cur+8}")
        for i in range(4):
            a(f"v_cvt_pk_bf16_f32 v{P+i}, v{cur+2*i}, v{cur+2*i+1}")
        a(f"v_exp_f32 v{cur+9}, v{cur+9}")
        a(f"v_exp_f32 v{cur+10}, v{cur+10}")
        a("s_waitcnt lgkmcnt(3)")
        a(f"v_mfma_f32_32x32x16_bf16 {vr(OA,16)}, {vr(vb_cur,4)}, {vr(P,4)}, {vr(OA,16)}")
        for i in range(11, 16):
            a(f"v_exp_f32 v{cur+i}, v{cur+i}")
        a.nop(1)
        for i in range(4, 8):
            a(f"v_cvt_pk_bf16_f32 v{P+i}, v{cur+2*i}, v{cur+2*i+1}")
        if u == 3:
            a("v_add_u32 v14, 0x1000, v14")
            a("v_add_u32 v15, v16, v15")
            a("s_add_u32 s41, s41, 1")
            a("s_cmp_lt_u32 s41, 16")
        else:
            a.nop(2)
        a(f"v_mfma_f32_32x32x16_bf16 {vr(OA,16)}, {vr(vb_cur+4,4)}, {vr(P+4,4)}, {vr(OA,16)}")
    a("s_cbranch_scc1 K2_LOOP")
    a(";@T 4")
    a("s_waitcnt lgkmcnt(0)")
    a.nop(16)
    a("s_cmp_lg_u32 s40, 0")
    a("s_cbranch_scc1 K2_EPI")
    a(f"v_mov_b32 v18, 0x{f32bits(2.0**-80):08x}")
    a(f"v_cmp_nge_f32 vcc, v{OA+8}, v18")
    a.nop(4)
    a("s_cbranch_vccz K2_EPI")
    a("s_mov_b32 s40, 1")
    a("s_mov_b32 s42, 0")
    a("v_mov_b32 v14, v20")
    a("v_mov_b32 v18, 0xff800000")
    a("s_mov_b32 s41, 0")
    a.lab("K2_MAXP")
    a(f"ds_read_b128 {vr(KB,4)}, v14")
    a("s_waitcnt lgkmcnt(0)")
    a(f"v_mfma_f32_32x32x16_bf16 {vr(S0,16)}, {vr(KB,4)}, {vr(QF,4)}, 0")
    a.nop(16)
    for i in range(0, 16, 2):
        a(f"v_max3_f32 v18, v18, v{S0+i}, v{S0+i+1}")
    a("v_add_u32 v14, 0x400, v14")
    a("s_add_u32 s41, s41, 1")
    a("s_cmp_lt_u32 s41, 64")
    a("s_cbranch_scc1 K2_MAXP")
    xhalf_add(a, 18, 19, "v_max_f32")
    a("v_sub_f32 v17, 0, v18")
    a("s_branch K2_MAIN")
    a.lab("K2_HOOK")
    a("s_cmp_eq_u32 s41, 1")
    a("s_cbranch_scc0 K2_H3")
    a("s_waitcnt vmcnt(2)")
    a("s_barrier")
    a.lab("K2_H3")
    a("s_cmp_eq_u32 s41, 3")
    a("s_cbranch_scc1 K2_HB")
    a("s_cmp_eq_u32 s41, 9")
    a("s_cbranch_scc0 K2_HI")
    a.lab("K2_HB")
    a("s_waitcnt vmcnt(0)")
    a("s_barrier")
    a.lab("K2_HI")
    a("s_cmp_gt_u32 s41, 5")
    a("s_cbranch_scc1 K2_BODY")
    a("s_add_u32 s44, s41, 2")
    a("s_lshl_b32 s44, s44, 13")
    chunk_dma()
    a("s_branch K2_BODY")
    a.lab("K2_EPI")
    a(f"v_rcp_f32 v18, v{OA+8}")
    a.nop(1)
    for i in range(8):
        a(f"v_mul_f32 v{OA+i}, v{OA+i}, v18")
    for i in range(4):
        a(f"v_cvt_pk_bf16_f32 v{P+i}, v{OA+2*i}, v{OA+2*i+1}")
    a("s_lshl_b32 s45, s23, 5")
    a("v_add_u32 v19, s45, v3")
    a("v_lshlrev_b32 v19, 10, v19")
    a("v_lshl_add_u32 v19, v4, 3, v19")
    a("s_lshl_b32 s43, s3, 5")
    a(f"s_add_u32 s43, s43, 0x{WS_O:x}")
    a(f"buffer_store_dwordx2 {vr(P,2)}, v19, s[24:27], s43 offen")
    a(f"buffer_store_dwordx2 {vr(P+2,2)}, v19, s[24:27], s43 offen offset:16")
    a.lab("K2_END")
    a("s_endpgm")
    return name, 128


if __name__ == "__main__":
    from gen2 import gen_k3, gen_k4a, gen_k4b
    ref = open(f"cdna_kernels/{NAME}.s.ref").read().splitlines()
    head = []
    for ln in ref:
        if ln.startswith(";") and "@launch" not in ln:
            head.append(ln)
        elif not ln.startswith(";"):
            break
    a = A()
    ks = []
    launches = []
    ks.append(gen_k1(a)); launches.append((256, 768, K1_LDS))
    ks.append(gen_k2(a)); launches.append((256, 512, K2_LDS))
    ks.append(gen_k3(a)); launches.append((256, 256, 65536))
    ks.append(gen_k4a(a)); launches.append((184, 1024, 103424))
    ks.append(gen_k4b(a)); launches.append((16, 256, 1024))
    nk = int(sys.argv[1]) if len(sys.argv) > 1 else len(ks)
    out = "\n".join(head) + "\n"
    for (n, _), (g, b, lds) in list(zip(ks, launches))[:nk]:
        out += f"; @launch kernel={n} grid=({g},1,1) block=({b},1,1) lds={lds}\n"
    out += '.amdgcn_target "amdgcn-amd-amdhsa--gfx950"\n.text\n'
    out += a.text()
    out += '.section .rodata,"a"\n'
    for n, v in ks:
        out += kd(n, v)
    open(f"cdna_kernels/{NAME}.s", "w").write(out)
    print("wrote", len(out), "bytes")
```

```python
from gen import *

WS_PS = 0xC80000
WS_SW = 0xC98000
WS_YP = 0xCA0000
assert WS_YP + 224 * 4096 <= WS_SIZE


def row_ror_sum(a, regs):
    for sh in (8, 4, 2, 1):
        a.nop(2)
        for r in regs:
            a(f"v_add_f32_dpp v{r}, v{r}, v{r} row_ror:{sh} row_mask:0xf bank_mask:0xf")


def ln_consts(a, m, e, rc):
    a(f"v_mul_f32 v{m}, 0x3b000000, v{m}")
    a(f"v_mul_f32 v{e}, 0x3b000000, v{e}")
    a(f"v_fma_f32 v{e}, -v{m}, v{m}, v{e}")
    a(f"v_max_f32 v{e}, 0, v{e}")
    bf16_round_to_f32(a, m, m)
    bf16_round_to_f32(a, e, e)
    a(f"v_add_f32 v{e}, 0x{f32bits(1e-5):08x}, v{e}")
    bf16_round_to_f32(a, e, e)
    a(f"v_sqrt_f32 v{e}, v{e}")
    a.nop(1)
    bf16_round_to_f32(a, e, e)
    a(f"v_rcp_f32 v{rc}, v{e}")
    a.nop(1)


def ln_pair(a, hp, m, d, rc, T, lp):
    a(f"v_lshlrev_b32 v{T+7}, 16, v{hp}")
    a(f"v_and_b32 v{T+8}, 0xffff0000, v{hp}")
    a(f"v_sub_f32 v{T}, v{T+7}, v{m}")
    a(f"v_sub_f32 v{T+1}, v{T+8}, v{m}")
    a(f"v_cvt_pk_bf16_f32 v{T+2}, v{T}, v{T+1}")
    a(f"v_lshlrev_b32 v{T}, 16, v{T+2}")
    a(f"v_and_b32 v{T+1}, 0xffff0000, v{T+2}")
    a(f"v_mul_f32 v{T+3}, v{T}, v{rc}")
    a(f"v_mul_f32 v{T+4}, v{T+1}, v{rc}")
    a(f"v_fma_f32 v{T+5}, -v{T+3}, v{d}, v{T}")
    a(f"v_fma_f32 v{T+6}, -v{T+4}, v{d}, v{T+1}")
    a(f"v_fmac_f32 v{T+3}, v{T+5}, v{rc}")
    a(f"v_fmac_f32 v{T+4}, v{T+6}, v{rc}")
    a(f"v_cvt_pk_bf16_f32 v{lp}, v{T+3}, v{T+4}")
    a(f"v_lshlrev_b32 v{T}, 16, v{lp}")
    a(f"v_and_b32 v{T+1}, 0xffff0000, v{lp}")


def gen_k3(a):
    name = "k3_proj_kernel"
    kernel_head(a, name)
    a("s_cmp_ge_u32 s2, 256")
    a("s_cbranch_scc1 K3_END")
    a("s_load_dwordx2 s[4:5], s[0:1], 0")
    a("s_load_dwordx2 s[6:7], s[0:1], 16")
    a("s_load_dwordx2 s[8:9], s[0:1], 80")
    a("s_load_dwordx2 s[44:45], s[0:1], 32")
    a("v_lshrrev_b32 v1, 6, v0")
    a("v_and_b32 v2, 63, v0")
    a.nop(1)
    a("v_readfirstlane_b32 s21, v1")
    a("v_and_b32 v3, 15, v2")
    a("v_lshrrev_b32 v4, 4, v2")
    a("s_and_b32 s3, s2, 3")
    a("s_lshr_b32 s20, s2, 2")
    a("s_lshl_b32 s22, s20, 5")
    a("s_lshl_b32 s23, s3, 8")
    AF = 32
    BR = 64
    FR = 128
    ACC = 160
    XR = 224
    WR = 232
    a("v_lshlrev_b32 v5, 13, v4")
    a("v_lshl_add_u32 v5, v3, 4, v5")
    a("v_add_u32 v5, s23, v5")
    a("v_add_u32 v6, 0x1000, v5")
    a("s_lshl_b32 s34, s21, 17")
    a("v_add_u32 v7, s22, v3")
    a("v_lshlrev_b32 v7, 10, v7")
    a("v_lshl_add_u32 v7, v4, 4, v7")
    a("s_lshl_b32 s35, s21, 8")
    a(f"s_add_u32 s35, s35, 0x{WS_O:x}")
    a("s_add_u32 s36, s35, 16384")
    a("s_lshr_b32 s37, s21, 1")
    a("s_lshl_b32 s37, s37, 4")
    a("s_and_b32 s38, s21, 1")
    a("s_lshl_b32 s38, s38, 1")
    a("s_add_u32 s37, s37, s38")
    a("s_add_u32 s37, s37, s22")
    a("v_lshl_add_u32 v10, v4, 2, s37")
    a("v_lshlrev_b32 v8, 10, v10")
    a("v_lshl_add_u32 v8, v3, 4, v8")
    a("v_add_u32 v8, s23, v8")
    a("v_lshlrev_b32 v9, 4, v3")
    a("v_add_u32 v9, s23, v9")
    a("s_waitcnt lgkmcnt(0)")
    a.srd(12, 4, 2048 * 512 * 2)
    a.srd(16, 6, 512 * 512 * 2)
    a.srd(24, 8, WS_SIZE)
    a.srd(48, 44, 1024)

    def bload(s, buf):
        a(f"s_add_u32 s39, s34, {s*32768}")
        for r in range(8):
            base = 5 if r < 4 else 6
            a(f"buffer_load_dwordx4 {vr(BR+32*buf+4*r,4)}, v{base}, s[16:19], s39 offen offset:{(r&3)*1024}")
    bload(0, 0)
    for rt in range(2):
        for s in range(4):
            a(f"buffer_load_dwordx4 {vr(AF+16*rt+4*s,4)}, v7, s[24:27], s{35+rt} offen offset:{64*s}")
    bload(1, 1)
    for i in range(2):
        a(f"buffer_load_dwordx4 {vr(XR+4*i,4)}, v8, s[12:15], 0 offen offset:{1024*i}")
    a(f"buffer_load_dwordx4 {vr(WR,4)}, v9, s[48:51], 0 offen")
    for i in range(64):
        a(f"v_mov_b32 v{ACC+i}, 0")
    a("s_mov_b32 s40, 0x05040100")
    a("s_mov_b32 s41, 0x07060302")
    a(";@T 0")
    waits = {0: 11, 1: 11, 2: 8, 3: 0}
    for s in range(4):
        a(f"s_waitcnt vmcnt({waits[s]})")
        if s == 0:
            a(";@T 1")
        bb = BR + 32 * (s & 1)
        for j in range(8):
            sel = "s40" if (j & 1) == 0 else "s41"
            for p in range(4):
                a(f"v_perm_b32 v{FR+4*j+p}, v{bb+4*(2*p+1)+(j>>1)}, v{bb+4*(2*p)+(j>>1)}, {sel}")
        if s + 2 < 4:
            bload(s + 2, s & 1)
        else:
            a.nop(1)
        for j in range(8):
            for rt in range(2):
                acc = vr(ACC + 32 * rt + 4 * j, 4)
                a(f"v_mfma_f32_16x16x32_bf16 {acc}, {vr(AF+16*rt+4*s,4)}, {vr(FR+4*j,4)}, {acc}")
    a(";@T 2")
    a.nop(10)
    a("v_lshlrev_b32 v11, 3, v2")
    a("s_lshl_b32 s39, s21, 12")
    a("v_add_u32 v12, s39, v11")
    for dest in range(4):
        rt, ip = dest >> 1, dest & 1
        for j in range(8):
            a(f"ds_write_b64 v12, {vr(ACC+32*rt+4*j+2*ip,2)} offset:{dest*16384+j*512}")
    a("s_waitcnt lgkmcnt(0)")
    a("s_barrier")
    a("s_lshl_b32 s39, s21, 14")
    a("v_add_u32 v12, s39, v11")
    RD = 64
    for src in range(4):
        for j in range(8):
            a(f"ds_read_b64 {vr(RD+16*src+2*j,2)}, v12 offset:{src*4096+j*512}")
    a("s_waitcnt lgkmcnt(0)")
    for k in range(16):
        a(f"v_add_f32 v{RD+k}, v{RD+k}, v{RD+16+k}")
        a(f"v_add_f32 v{RD+32+k}, v{RD+32+k}, v{RD+48+k}")
        a(f"v_add_f32 v{RD+k}, v{RD+k}, v{RD+32+k}")
    a(";@T 3")
    T = 128
    HP = 144
    for jp in range(4):
        a(f"v_lshlrev_b32 v{160+2*jp}, 16, v{WR+jp}")
        a(f"v_and_b32 v{161+2*jp}, 0xffff0000, v{WR+jp}")
    for ii in range(2):
        for k in range(3):
            a(f"v_mov_b32 v{16+3*ii+k}, 0")
        for jp in range(4):
            a(f"v_cvt_pk_bf16_f32 v{T}, v{RD+2*(2*jp)+ii}, v{RD+2*(2*jp+1)+ii}")
            a(f"v_lshlrev_b32 v{T+1}, 16, v{T}")
            a(f"v_and_b32 v{T+2}, 0xffff0000, v{T}")
            a(f"v_lshlrev_b32 v{T+3}, 16, v{XR+4*ii+jp}")
            a(f"v_and_b32 v{T+4}, 0xffff0000, v{XR+4*ii+jp}")
            a(f"v_add_f32 v{T+1}, v{T+1}, v{T+3}")
            a(f"v_add_f32 v{T+2}, v{T+2}, v{T+4}")
            a(f"v_cvt_pk_bf16_f32 v{HP+4*ii+jp}, v{T+1}, v{T+2}")
            a(f"v_lshlrev_b32 v{T+1}, 16, v{HP+4*ii+jp}")
            a(f"v_and_b32 v{T+2}, 0xffff0000, v{HP+4*ii+jp}")
            s_, q_, d_ = 16 + 3 * ii, 17 + 3 * ii, 18 + 3 * ii
            a(f"v_add_f32 v{s_}, v{s_}, v{T+1}")
            a(f"v_fmac_f32 v{q_}, v{T+1}, v{T+1}")
            a(f"v_fmac_f32 v{d_}, v{T+1}, v{160+2*jp}")
            a(f"v_add_f32 v{s_}, v{s_}, v{T+2}")
            a(f"v_fmac_f32 v{q_}, v{T+2}, v{T+2}")
            a(f"v_fmac_f32 v{d_}, v{T+2}, v{161+2*jp}")
    a(f"s_mov_b32 s38, 0x{WS_H:x}")
    for ii in range(2):
        a(f"buffer_store_dwordx4 {vr(HP+4*ii,4)}, v8, s[24:27], s38 offen offset:{1024*ii}")
    row_ror_sum(a, list(range(16, 22)))
    a("v_mul_u32_u24 v13, 48, v10")
    a("s_lshl_b32 s39, s3, 2")
    a(f"s_add_u32 s39, s39, 0x{WS_PS:x}")
    for ii in range(2):
        for k in range(3):
            a(f"buffer_store_dword v{16+3*ii+k}, v13, s[24:27], s39 offen offset:{48*ii+16*k}")
    a("s_cmp_lg_u32 s20, 0")
    a("s_cbranch_scc1 K3_END")
    a("v_add_f32 v30, v160, v161")
    for i in range(2, 8):
        a(f"v_add_f32 v30, v30, v{160+i}")
    row_ror_sum(a, [30])
    a("v_mov_b32 v31, 0")
    a("s_lshl_b32 s39, s3, 2")
    a(f"s_add_u32 s39, s39, 0x{WS_SW:x}")
    a("buffer_store_dword v30, v31, s[24:27], s39 offen")
    a.lab("K3_END")
    a("s_endpgm")
    return name, 236


def top2_merge(a, k1, k2, o1, o2, t):
    a(f"v_min_u32 v{t}, v{k1}, v{o1}")
    a(f"v_max_u32 v{k1}, v{k1}, v{o1}")
    a(f"v_max_u32 v{k2}, v{k2}, v{o2}")
    a(f"v_max_u32 v{k2}, v{k2}, v{t}")


def dpp_sum(a, regs, shifts):
    for sh in shifts:
        a.nop(2)
        for r in regs:
            a(f"v_add_f32_dpp v{r}, v{r}, v{r} row_ror:{sh} row_mask:0xf bank_mask:0xf")


def gen_k4a(a):
    name = "k4a_ffn1_kernel"
    kernel_head(a, name)
    a("s_cmp_ge_u32 s2, 184")
    a("s_cbranch_scc1 K4A_END")
    a("s_load_dwordx2 s[4:5], s[0:1], 40")
    a("s_load_dwordx2 s[6:7], s[0:1], 48")
    a("s_load_dwordx2 s[8:9], s[0:1], 80")
    a("s_load_dwordx2 s[10:11], s[0:1], 56")
    a("s_load_dwordx2 s[44:45], s[0:1], 32")
    a("s_load_dwordx2 s[46:47], s[0:1], 64")
    a("v_lshrrev_b32 v1, 6, v0")
    a("v_and_b32 v2, 63, v0")
    a.nop(1)
    a("v_readfirstlane_b32 s21, v1")
    a("v_lshlrev_b32 v5, 4, v2")
    a("s_waitcnt lgkmcnt(0)")
    a.srd(24, 8, WS_SIZE)
    a("s_cmp_lt_u32 s2, 56")
    a("s_cbranch_scc1 K4A_FFN")
    a.srd(28, 46, 2048 * 512 * 2)
    a("s_sub_u32 s22, s2, 56")
    a("s_lshl_b32 s22, s22, 4")
    a("s_add_u32 s22, s22, s21")
    a("s_lshl_b32 s23, s22, 10")
    a(f"s_add_u32 s52, s23, 0x{WS_H:x}")
    a("buffer_load_dwordx4 v[32:35], v5, s[24:27], s52 offen")
    a("s_mul_i32 s53, s22, 48")
    a(f"s_add_u32 s53, s53, 0x{WS_PS:x}")
    a("s_add_u32 s32, s8, s53")
    a("s_addc_u32 s33, s9, 0")
    a("s_load_dwordx4 s[56:59], s[32:33], 0")
    a("s_load_dwordx4 s[60:63], s[32:33], 16")
    a("s_waitcnt lgkmcnt(0)")
    for k in range(2):
        a(f"v_mov_b32 v{8+k}, s{56+4*k}")
        for cb in range(1, 4):
            a(f"v_add_f32 v{8+k}, s{56+4*k+cb}, v{8+k}")
    ln_consts(a, 8, 9, 10)
    a("s_waitcnt vmcnt(0)")
    T = 48
    for jp in range(4):
        ln_pair(a, 32 + jp, 8, 9, 10, T, T + 10)
        a(f"v_add_f32 v{T}, v{T}, v{T+7}")
        a(f"v_add_f32 v{T+1}, v{T+1}, v{T+8}")
        a(f"v_cvt_pk_bf16_f32 v{36+jp}, v{T}, v{T+1}")
    a("buffer_store_dwordx4 v[36:39], v5, s[28:31], s23 offen")
    a("s_branch K4A_END")
    a.lab("K4A_FFN")
    a.srd(12, 4, 512 * 1792 * 2)
    a.srd(16, 6, 512 * 1792 * 2)
    a.srd(28, 10, 1792 * 512 * 2)
    a.srd(48, 44, 1024)
    PSV = 32
    a("v_mul_u32_u24 v20, 96, v0")
    a(f"s_mov_b32 s38, 0x{WS_PS:x}")
    for q in range(6):
        a(f"buffer_load_dwordx4 {vr(PSV+4*q,4)}, v20, s[24:27], s38 offen offset:{16*q}")
    a(f"s_add_u32 s32, s8, 0x{WS_SW:x}")
    a("s_addc_u32 s33, s9, 0")
    a("s_load_dwordx4 s[56:59], s[32:33], 0")
    a("v_lshrrev_b32 v7, 2, v2")
    a("v_mul_u32_u24 v7, 0xe00, v7")
    a("v_and_b32 v3, 3, v2")
    a("v_lshl_add_u32 v7, v3, 4, v7")
    a("s_lshl_b32 s22, s2, 6")
    a("s_mul_i32 s23, s21, 114688")
    a("s_add_u32 s22, s22, s23")
    a("s_lshl_b32 s23, s21, 11")
    for i in range(2):
        for mi in range(2):
            a(f"s_add_u32 s36, s23, {mi*32768 + i*1024}")
            a("s_mov_b32 m0, s36")
            a(f"s_add_u32 s37, s22, {i*57344}")
            a(f"buffer_load_dwordx4 v7, s[{12+4*mi}:{15+4*mi}], s37 offen lds")
    a("s_lshl_b32 s22, s2, 15")
    a("s_add_u32 s22, s22, s23")
    for i in range(2):
        a(f"s_add_u32 s36, s23, {65536 + i*1024}")
        a("s_mov_b32 m0, s36")
        a(f"s_add_u32 s37, s22, {i*1024}")
        a("buffer_load_dwordx4 v5, s[28:31], s37 offen lds")
    a("v_and_b32 v4, 255, v0")
    a("v_lshlrev_b32 v6, 2, v4")
    a("buffer_load_dword v60, v6, s[48:51], 0 offen")
    a("v_mov_b32 v8, 0")
    a("v_mov_b32 v9, 0")
    a("v_mov_b32 v10, 100352")
    a("ds_write_b64 v10, v[8:9]")
    a("ds_write_b64 v10, v[8:9] offset:8")
    a(";@T 0")
    a("s_waitcnt vmcnt(7) lgkmcnt(0)")
    a(";@T 1")
    a("v_mov_b32 v8, s56")
    for q in range(1, 4):
        a(f"v_add_f32 v8, s{56+q}, v8")
    a("v_lshlrev_b32 v21, 1, v0")
    a("v_sub_u32 v21, 0x7ff, v21")
    for i in range(2):
        for k in range(3):
            b_ = PSV + 12 * i + 4 * k
            a(f"v_add_f32 v{12+k}, v{b_}, v{b_+1}")
            a(f"v_add_f32 v15, v{b_+2}, v{b_+3}")
            a(f"v_add_f32 v{12+k}, v{12+k}, v15")
        a("v_mul_f32 v12, 0x3b000000, v12")
        a("v_mul_f32 v13, 0x3b000000, v13")
        a("v_fma_f32 v13, -v12, v12, v13")
        a(f"v_add_f32 v13, 0x{f32bits(1e-5):08x}, v13")
        a("v_rsq_f32 v13, v13")
        a("v_fma_f32 v14, -v12, v8, v14")
        a("v_mul_f32 v14, v14, v13")
        a("v_cvt_pk_bf16_f32 v14, v14, v14")
        a("v_lshlrev_b32 v14, 16, v14")
        a("v_ashrrev_i32 v22, 31, v14")
        a("v_or_b32 v22, 0x80000000, v22")
        a("v_xor_b32 v14, v14, v22")
        a("v_and_b32 v14, 0xffff0000, v14")
        a(f"v_subrev_u32 v22, {i}, v21")
        a(f"v_or_b32 v{10+i}, v14, v22")
    a("v_max_u32 v12, v10, v11")
    a("v_min_u32 v11, v10, v11")
    a("v_mov_b32 v10, v12")
    for sh in (8, 4, 2, 1):
        a.nop(2)
        a(f"v_mov_b32_dpp v12, v10 row_ror:{sh} row_mask:0xf bank_mask:0xf")
        a(f"v_mov_b32_dpp v13, v11 row_ror:{sh} row_mask:0xf bank_mask:0xf")
        top2_merge(a, 10, 11, 12, 13, 22)
    a("v_lshrrev_b32 v22, 4, v0")
    a("v_lshlrev_b32 v22, 3, v22")
    a("ds_write_b64 v22, v[10:11] offset:0") if False else a("v_add_u32 v22, 100416, v22")
    a("ds_write_b64 v22, v[10:11]")
    a("s_waitcnt lgkmcnt(0)")
    a("s_barrier")
    a("s_cmp_ge_u32 s21, 8")
    a("s_cbranch_scc1 K4A_XDONE")
    a("v_lshlrev_b32 v22, 3, v2")
    a("v_add_u32 v22, 100416, v22")
    a("ds_read_b64 v[10:11], v22")
    a("s_waitcnt lgkmcnt(0)")
    for sh in (8, 4, 2, 1):
        a.nop(2)
        a(f"v_mov_b32_dpp v12, v10 row_ror:{sh} row_mask:0xf bank_mask:0xf")
        a(f"v_mov_b32_dpp v13, v11 row_ror:{sh} row_mask:0xf bank_mask:0xf")
        top2_merge(a, 10, 11, 12, 13, 22)
    a.nop(1)
    for q in range(4):
        a(f"v_readlane_b32 s{56+2*q}, v10, {16*q}")
        a(f"v_readlane_b32 s{57+2*q}, v11, {16*q}")
    a.nop(3)
    for q in range(1, 4):
        a(f"s_min_u32 s64, s56, s{56+2*q}")
        a(f"s_max_u32 s56, s56, s{56+2*q}")
        a(f"s_max_u32 s57, s57, s{57+2*q}")
        a("s_max_u32 s57, s57, s64")
    a("s_and_b32 s60, s56, 0x7ff")
    a("s_sub_u32 s60, 0x7ff, s60")
    a("s_and_b32 s61, s57, 0x7ff")
    a("s_sub_u32 s61, 0x7ff, s61")
    a(";@T 2")
    a("s_cmp_lt_u32 s21, 4")
    a("s_cselect_b32 s63, s60, s61")
    a("s_lshl_b32 s62, s63, 10")
    a(f"s_add_u32 s62, s62, 0x{WS_H:x}")
    a("buffer_load_dword v40, v6, s[24:27], s62 offen")
    a("s_mul_i32 s62, s63, 48")
    a(f"s_add_u32 s62, s62, 0x{WS_PS:x}")
    a("s_add_u32 s32, s8, s62")
    a("s_addc_u32 s33, s9, 0")
    a("s_load_dwordx4 s[64:67], s[32:33], 0")
    a("s_load_dwordx4 s[68:71], s[32:33], 16")
    a("v_lshlrev_b32 v61, 16, v60")
    a("v_and_b32 v62, 0xffff0000, v60")
    a("v_lshlrev_b32 v23, 2, v0")
    a("v_add_u32 v23, 98304, v23")
    a("s_waitcnt lgkmcnt(0)")
    for k in range(2):
        a(f"v_mov_b32 v{8+k}, s{64+4*k}")
        for cb in range(1, 4):
            a(f"v_add_f32 v{8+k}, s{64+4*k+cb}, v{8+k}")
    ln_consts(a, 8, 9, 10)
    a("s_waitcnt vmcnt(0)")
    ln_pair(a, 40, 8, 9, 10, 24, 41)
    a("ds_write_b32 v23, v41")
    a("v_mul_f32 v16, v24, v61")
    a("v_fmac_f32 v16, v25, v62")
    dpp_sum(a, [16], (8, 4, 2, 1))
    a("v_lshrrev_b32 v22, 4, v0")
    a("v_lshlrev_b32 v22, 2, v22")
    a("v_add_u32 v22, 103104, v22")
    a("ds_write_b32 v22, v16")
    a.lab("K4A_XDONE")
    a(";@T 3")
    a("s_waitcnt vmcnt(0) lgkmcnt(0)")
    a("s_barrier")
    a("v_and_b32 v3, 31, v2")
    a("v_lshrrev_b32 v4, 5, v2")
    a("v_cmp_gt_u32 vcc, 2, v3")
    a("v_and_b32 v7, 15, v2")
    a("v_lshrrev_b32 v8, 2, v7")
    a("v_and_b32 v9, 3, v7")
    a("v_lshl_add_u32 v8, v4, 3, v8")
    a("v_bfe_u32 v7, v2, 4, 1")
    a("v_lshlrev_b32 v7, 5, v7")
    a("v_lshl_add_u32 v7, v9, 3, v7")
    a("v_mov_b32 v11, 100352")
    a("s_cmp_ge_u32 s21, 8")
    a("s_cbranch_scc1 K4A_GDONE")
    a("s_and_b32 s36, s21, 1")
    a("s_lshr_b32 s37, s21, 1")
    a("s_lshl_b32 s38, s36, 15")
    a("s_lshl_b32 s39, s37, 13")
    a("s_add_u32 s38, s38, s39")
    a("v_lshl_add_u32 v12, v8, 6, v7")
    a("v_add_u32 v12, s38, v12")
    a("s_lshl_b32 s39, s37, 8")
    a("s_add_u32 s39, s39, 98304")
    a("v_lshlrev_b32 v13, 10, v3")
    a("v_lshl_add_u32 v13, v4, 4, v13")
    a("v_add_u32 v13, s39, v13")
    a("v_mov_b32 v14, 32")
    a("v_cndmask_b32 v13, v11, v13, vcc")
    a("v_cndmask_b32 v14, 0, v14, vcc")
    for i in range(16):
        a(f"v_mov_b32 v{64+i}, 0")
    for s in range(8):
        a(f"ds_read_b128 {vr(32+4*(s&1),4)}, v13")
        a(f"ds_read_b64_tr_b16 {vr(40+4*(s&1),2)}, v12 offset:{s*1024}")
        a(f"ds_read_b64_tr_b16 {vr(42+4*(s&1),2)}, v12 offset:{s*1024+256}")
        a("v_add_u32 v13, v14, v13")
        a("s_waitcnt lgkmcnt(0)")
        a(f"v_mfma_f32_32x32x16_bf16 v[64:79], {vr(32+4*(s&1),4)}, {vr(40+4*(s&1),4)}, v[64:79]")
    a.nop(16)
    a("s_lshl_b32 s38, s37, 9")
    a("s_lshl_b32 s39, s36, 8")
    a("s_add_u32 s38, s38, s39")
    a("s_add_u32 s38, s38, 100928")
    a("v_lshlrev_b32 v15, 2, v3")
    a("v_add_u32 v15, s38, v15")
    a("v_cmp_eq_u32 s[66:67], 0, v4")
    a("s_and_saveexec_b64 s[68:69], s[66:67]")
    a("ds_write_b32 v15, v64")
    a("ds_write_b32 v15, v65 offset:128")
    a("s_mov_b64 exec, s[68:69]")
    a.lab("K4A_GDONE")
    a("s_waitcnt lgkmcnt(0)")
    a("s_barrier")
    a("s_cmp_lg_u32 s21, 0")
    a("s_cbranch_scc1 K4A_ADONE")
    a("v_lshlrev_b32 v12, 2, v2")
    a("v_add_u32 v12, 100928, v12")
    for kq in range(4):
        a(f"ds_read_b32 v{32+kq}, v12 offset:{512*kq}")
        a(f"ds_read_b32 v{36+kq}, v12 offset:{512*kq+256}")
    a("s_waitcnt lgkmcnt(0)")
    for b in (32, 36):
        a(f"v_add_f32 v{b}, v{b}, v{b+1}")
        a(f"v_add_f32 v{b+2}, v{b+2}, v{b+3}")
        a(f"v_add_f32 v{b}, v{b}, v{b+2}")
    bf16_round_to_f32(a, 13, 32)
    bf16_round_to_f32(a, 15, 36)
    a(f"v_mul_f32 v14, 0x{f32bits(-math.log2(math.e)):08x}, v13")
    a("v_exp_f32 v14, v14")
    a.nop(1)
    a("v_add_f32 v14, 1.0, v14")
    a("v_rcp_f32 v16, v14")
    a.nop(1)
    a("v_mul_f32 v17, v13, v16")
    a("v_fma_f32 v18, -v17, v14, v13")
    a("v_fmac_f32 v17, v18, v16")
    bf16_round_to_f32(a, 17, 17)
    a("v_mul_f32 v17, v17, v15")
    a("v_cvt_pk_bf16_f32 v17, v17, v17")
    a("v_lshlrev_b32 v12, 1, v2")
    a("v_add_u32 v12, 102976, v12")
    a("ds_write_b16 v12, v17")
    a.lab("K4A_ADONE")
    a(";@T 4")
    a("s_waitcnt lgkmcnt(0)")
    a("s_barrier")
    a("s_lshl_b32 s38, s21, 6")
    a("s_add_u32 s38, s38, 65536")
    a("v_lshl_add_u32 v12, v8, 10, v7")
    a("v_add_u32 v12, s38, v12")
    a("v_lshlrev_b32 v13, 6, v3")
    a("v_lshl_add_u32 v13, v4, 4, v13")
    a("v_add_u32 v13, 102976, v13")
    a("v_add_u32 v14, 32, v13")
    a("v_cndmask_b32 v13, v11, v13, vcc")
    a("v_cndmask_b32 v14, v11, v14, vcc")
    for s in range(2):
        a(f"ds_read_b128 {vr(32+4*s,4)}, v{13+s}")
        a(f"ds_read_b64_tr_b16 {vr(40+4*s,2)}, v12 offset:{s*16384}")
        a(f"ds_read_b64_tr_b16 {vr(42+4*s,2)}, v12 offset:{s*16384+4096}")
    a("s_waitcnt lgkmcnt(0)")
    a("v_mfma_f32_32x32x16_bf16 v[64:79], v[32:35], v[40:43], 0")
    a("v_mfma_f32_32x32x16_bf16 v[64:79], v[36:39], v[44:47], v[64:79]")
    a("v_lshlrev_b32 v15, 2, v3")
    a("s_lshl_b32 s36, s2, 12")
    a("s_lshl_b32 s37, s21, 7")
    a("s_add_u32 s36, s36, s37")
    a(f"s_add_u32 s36, s36, 0x{WS_YP:x}")
    a("v_cmp_eq_u32 s[66:67], 0, v4")
    a.nop(16)
    a("s_and_saveexec_b64 s[68:69], s[66:67]")
    a("buffer_store_dword v64, v15, s[24:27], s36 offen")
    a("buffer_store_dword v65, v15, s[24:27], s36 offen offset:2048")
    a("s_mov_b64 exec, s[68:69]")
    a("s_cmp_lg_u32 s2, 0")
    a("s_cbranch_scc1 K4A_END")
    a("s_cmp_lg_u32 s21, 0")
    a("s_cbranch_scc1 K4A_END")
    a("v_lshlrev_b32 v9, 2, v2")
    a("v_add_u32 v9, 103104, v9")
    a("ds_read_b32 v16, v9")
    a("s_waitcnt lgkmcnt(0)")
    dpp_sum(a, [16], (8, 4, 2, 1))
    bf16_round_to_f32(a, 16, 16)
    a.nop(1)
    a("v_readlane_b32 s56, v16, 0")
    a("v_readlane_b32 s57, v16, 16")
    a.nop(2)
    a("v_mov_b32 v18, s56")
    a("v_mov_b32 v19, s57")
    a("v_mov_b32 v16, s60")
    a("v_mov_b32 v17, s61")
    a("v_mov_b32 v20, 0")
    a(f"s_mov_b32 s38, 0x{WS_SEL:x}")
    a("buffer_store_dwordx4 v[16:19], v20, s[24:27], s38 offen")
    a.lab("K4A_END")
    a("s_endpgm")
    return name, 80


def gen_k4b(a):
    name = "k4b_ffn2_kernel"
    kernel_head(a, name)
    a("s_cmp_ge_u32 s2, 16")
    a("s_cbranch_scc1 K4B_END")
    a("s_load_dwordx2 s[8:9], s[0:1], 80")
    a("s_load_dwordx2 s[10:11], s[0:1], 64")
    a("v_lshrrev_b32 v1, 6, v0")
    a("v_and_b32 v2, 63, v0")
    a.nop(1)
    a("v_readfirstlane_b32 s21, v1")
    a("s_waitcnt lgkmcnt(0)")
    a.srd(24, 8, WS_SIZE)
    a.srd(28, 10, 2048 * 512 * 2)
    a(f"s_add_u32 s32, s8, 0x{WS_SEL:x}")
    a("s_addc_u32 s33, s9, 0")
    a("s_load_dwordx4 s[60:63], s[32:33], 0")
    a("v_lshlrev_b32 v5, 2, v2")
    a("s_lshl_b32 s22, s2, 8")
    a("s_mul_i32 s23, s21, 57344")
    a("s_add_u32 s22, s22, s23")
    a(f"s_add_u32 s22, s22, 0x{WS_YP:x}")
    for p in range(14):
        a(f"buffer_load_dword v{32+p}, v5, s[24:27], s22 offen")
        a("s_add_u32 s22, s22, 4096")
    a("s_waitcnt lgkmcnt(0)")
    a("s_lshr_b32 s34, s2, 3")
    a("s_cmp_eq_u32 s34, 0")
    a("s_cselect_b32 s35, s60, s61")
    a("s_cselect_b32 s36, s62, s63")
    a("s_and_b32 s37, s2, 7")
    a("s_lshl_b32 s37, s37, 7")
    a("s_lshl_b32 s38, s35, 10")
    a("s_add_u32 s37, s37, s38")
    a("v_lshlrev_b32 v6, 1, v2")
    a(f"s_add_u32 s38, s37, 0x{WS_H:x}")
    a("buffer_load_ushort v20, v6, s[24:27], s38 offen")
    a("s_mul_i32 s39, s35, 48")
    a(f"s_add_u32 s39, s39, 0x{WS_PS:x}")
    a("s_add_u32 s32, s8, s39")
    a("s_addc_u32 s33, s9, 0")
    a("s_load_dwordx4 s[64:67], s[32:33], 0")
    a("s_load_dwordx4 s[68:71], s[32:33], 16")
    a("s_waitcnt vmcnt(1)")
    for p in range(1, 14):
        a(f"v_add_f32 v32, v32, v{32+p}")
    a("v_lshlrev_b32 v7, 2, v0")
    a("ds_write_b32 v7, v32")
    a("s_waitcnt lgkmcnt(0)")
    a("s_barrier")
    a("s_cmp_lg_u32 s21, 0")
    a("s_cbranch_scc1 K4B_END")
    for w in range(4):
        a(f"ds_read_b32 v{32+w}, v5 offset:{256*w}")
    for k in range(2):
        a(f"v_mov_b32 v{8+k}, s{64+4*k}")
        for cb in range(1, 4):
            a(f"v_add_f32 v{8+k}, s{64+4*k+cb}, v{8+k}")
    ln_consts(a, 8, 9, 10)
    a("v_mov_b32 v23, s36")
    a(f"v_mul_f32 v24, 0x{f32bits(-math.log2(math.e)):08x}, v23")
    a("v_exp_f32 v24, v24")
    a.nop(1)
    a("v_add_f32 v24, 1.0, v24")
    a("v_rcp_f32 v25, v24")
    a.nop(1)
    a("v_fma_f32 v26, -v25, v24, 1.0")
    a("v_fmac_f32 v25, v26, v25")
    bf16_round_to_f32(a, 25, 25)
    a("s_waitcnt vmcnt(0) lgkmcnt(0)")
    for st in (2, 1):
        for k in range(st):
            a(f"v_add_f32 v{32+k}, v{32+k}, v{32+st+k}")
    bf16_round_to_f32(a, 32, 32)
    a("v_mul_f32 v32, v32, v25")
    bf16_round_to_f32(a, 32, 32)
    ln_pair(a, 20, 8, 9, 10, 50, 60)
    a("v_add_f32 v50, v50, v32")
    bf16_round_to_f32(a, 50, 50)
    a("v_add_f32 v50, v50, v57")
    a("v_cvt_pk_bf16_f32 v50, v50, v50")
    a("buffer_store_short v50, v6, s[28:31], s37 offen")
    a.lab("K4B_END")
    a("s_endpgm")
    return name, 64
```

```python
import math, struct, sys, os
EXP=os.environ.get('EXP','')

NAME = "sequential_preLN__softmax_full_mha__moe_arch_mod__prompt"

WS_QF = 0x000000
WS_KF = 0x200000
WS_VF = 0x400000
WS_O = 0x600000
WS_H = 0x800000
WS_LN2 = 0xA00000
WS_KN = 0xC00000
WS_R = 0xC40000
WS_ACT = 0xC50000
WS_SEL = 0xC60000
WS_SIZE = 0xE00000

CSCALE = 0.25 * math.log2(math.e)


def f32bits(x):
    return struct.unpack("<I", struct.pack("<f", x))[0]


class A:
    def __init__(self):
        self.l = []

    def __call__(self, s):
        self.l.append("    " + s)

    def lab(self, s):
        self.l.append(s + ":")

    def raw(self, s):
        self.l.append(s)

    def nop(self, n):
        while n > 0:
            k = min(n, 16)
            self(f"s_nop {k-1}")
            n -= k

    def srd(self, d, base, size, off=0):
        if off:
            self(f"s_add_u32 s{d}, s{base}, 0x{off:x}")
            self(f"s_addc_u32 s{d+1}, s{base+1}, 0")
        else:
            self(f"s_mov_b32 s{d}, s{base}")
            self(f"s_mov_b32 s{d+1}, s{base+1}")
        self(f"s_mov_b32 s{d+2}, 0x{size:x}")
        self(f"s_mov_b32 s{d+3}, 0x00020000")

    def text(self):
        return "\n".join(self.l) + "\n"


def vr(a, n):
    return f"v[{a}:{a+n-1}]"


def kernel_head(a, name):
    a.raw(f".globl {name}")
    a.raw(".p2align 8")
    a.raw(f".type {name},@function")
    a.lab(name)


def kd(name, vgpr, sgpr=102):
    acc = (vgpr + 3) // 4 * 4
    return f""".p2align 6
.amdhsa_kernel {name}
  .amdhsa_next_free_vgpr {vgpr}
  .amdhsa_next_free_sgpr {sgpr}
  .amdhsa_accum_offset {acc}
  .amdhsa_group_segment_fixed_size 0
  .amdhsa_kernarg_size 88
  .amdhsa_user_sgpr_count 2
  .amdhsa_user_sgpr_kernarg_segment_ptr 1
  .amdhsa_system_sgpr_workgroup_id_x 1
.end_amdhsa_kernel
"""


def bf16_round_to_f32(a, dst, src):
    a(f"v_cvt_pk_bf16_f32 v{dst}, v{src}, v{src}")
    a(f"v_lshlrev_b32 v{dst}, 16, v{dst}")


def xhalf_add(a, v, t, op="v_add_f32"):
    a(f"v_mov_b32 v{t}, v{v}")
    a.nop(2)
    a(f"v_permlane32_swap_b32 v{v}, v{t}")
    a.nop(2)
    a(f"{op} v{v}, v{v}, v{t}")


K1_LDS = 117248
def gen_k1(a):
    name = "k1_qkv_kernel"
    kernel_head(a, name)
    a("s_cmp_ge_u32 s2, 256")
    a("s_cbranch_scc1 K1_END")
    a("s_load_dwordx2 s[4:5], s[0:1], 0")
    a("s_load_dwordx2 s[6:7], s[0:1], 8")
    a("s_load_dwordx2 s[8:9], s[0:1], 80")
    a("s_and_b32 s3, s2, 15")
    a("s_lshr_b32 s20, s2, 4")
    a("v_lshrrev_b32 v1, 6, v0")
    a("v_and_b32 v2, 63, v0")
    a.nop(1)
    a("v_readfirstlane_b32 s58, v1")
    a("v_and_b32 v3, 31, v2")
    a("v_lshrrev_b32 v4, 5, v2")
    a.nop(2)
    a("s_and_b32 s21, s58, 3")
    ACC = 64
    BF = 32
    AFR = 112
    a("s_lshl_b32 s22, s20, 7")
    a("s_lshl_b32 s23, s21, 5")
    a("s_add_u32 s22, s22, s23")
    a("s_lshl_b32 s29, s21, 12")
    a("s_lshl_b32 s34, s21, 7")
    a("s_add_u32 s34, s34, 114688")
    a("s_lshr_b32 s59, s58, 2")
    a("s_cmp_eq_u32 s59, 1")
    a("s_cbranch_scc0 K1_NOTDMA")
    a("v_lshrrev_b32 v7, 3, v2")
    a("v_lshlrev_b32 v7, 10, v7")
    a("v_and_b32 v8, 7, v2")
    a("v_lshrrev_b32 v9, 4, v2")
    a("v_xor_b32 v10, v8, v9")
    a("v_lshl_add_u32 v5, v10, 4, v7")
    a("v_xor_b32 v10, 4, v10")
    a("v_lshl_add_u32 v6, v10, 4, v7")
    for b in range(3):
        a(f"v_add_u32 v7, {64*b}, v2")
        a("v_mul_u32_u24 v8, 0xaaab, v7")
        a("v_lshrrev_b32 v8, 19, v8")
        a("v_mul_u32_u24 v9, 12, v8")
        a("v_sub_u32 v9, v7, v9")
        a("v_mul_u32_u24 v8, 0xc00, v8")
        a(f"v_lshl_add_u32 v{10+b}, v9, 4, v8")
    a("s_lshl_b32 s28, s22, 10")
    a("s_mul_i32 s30, s21, 49152")
    a("s_mul_i32 s31, s3, 192")
    a("s_add_u32 s30, s30, s31")
    a("s_mul_i32 s31, s21, 3072")
    a("s_add_u32 s31, s31, 65536")
    a("s_waitcnt lgkmcnt(0)")
    a.srd(12, 4, 2048 * 512 * 2)
    a.srd(16, 6, 512 * 1536 * 2)

    def dma_dyn():
        a("s_and_b32 s55, s54, 3")
        a("s_lshl_b32 s56, s55, 14")
        a("s_add_u32 s56, s56, s29")
        a("s_lshl_b32 s57, s54, 7")
        a("s_add_u32 s57, s57, s28")
        for i in range(4):
            a("s_mov_b32 m0, s56")
            a("s_add_u32 s56, s56, 1024")
            a(f"buffer_load_dwordx4 v{5+(i&1)}, s[12:15], s57 offen lds")
            a("s_add_u32 s57, s57, 8192")
        a("s_mul_i32 s56, s55, 12288")
        a("s_add_u32 s56, s56, s31")
        a("s_mul_i32 s57, s54, 196608")
        a("s_add_u32 s57, s57, s30")
        for b in range(3):
            a("s_mov_b32 m0, s56")
            a("s_add_u32 s56, s56, 1024")
            a(f"buffer_load_dwordx4 v{10+b}, s[16:19], s57 offen lds")
    a("s_mov_b32 s54, 0")
    a.lab("K1_HPRE")
    dma_dyn()
    a("s_add_u32 s54, s54, 1")
    a("s_cmp_lt_u32 s54, 3")
    a("s_cbranch_scc1 K1_HPRE")
    a("s_mov_b32 s50, 0")
    a.lab("K1_HLOOP")
    a("s_cmp_lt_u32 s50, 6")
    a("s_cbranch_scc1 K1_HW14")
    a("s_cmp_eq_u32 s50, 6")
    a("s_cbranch_scc1 K1_HW7")
    a("s_waitcnt vmcnt(0)")
    a.lab("K1_HW7")
    a("s_waitcnt vmcnt(7)")
    a.lab("K1_HW14")
    a("s_waitcnt vmcnt(14)")
    a("s_barrier")
    a("s_cmp_ge_u32 s50, 5")
    a("s_cbranch_scc1 K1_HNODMA")
    a("s_add_u32 s54, s50, 3")
    dma_dyn()
    a.lab("K1_HNODMA")
    a("s_add_u32 s50, s50, 1")
    a("s_cmp_lt_u32 s50, 8")
    a("s_cbranch_scc1 K1_HLOOP")
    a("s_branch K1_END")
    a.lab("K1_NOTDMA")
    a("v_lshrrev_b32 v7, 1, v3")
    a("v_and_b32 v7, 7, v7")
    a("v_lshlrev_b32 v8, 7, v3")
    a("v_add_u32 v8, s29, v8")
    for sp in range(4):
        a(f"v_add_u32 v9, {2*sp}, v4")
        a("v_xor_b32 v9, v9, v7")
        a(f"v_lshl_add_u32 v{120+sp}, v9, 4, v8")
    a("v_and_b32 v7, 15, v2")
    a("v_lshrrev_b32 v8, 2, v7")
    a("v_and_b32 v9, 3, v7")
    a("v_lshl_add_u32 v8, v4, 3, v8")
    a("v_mul_u32_u24 v8, 192, v8")
    a("v_lshrrev_b32 v7, 4, v2")
    a("v_and_b32 v7, 1, v7")
    a("v_lshlrev_b32 v7, 5, v7")
    a("v_lshl_add_u32 v7, v9, 3, v7")
    a("v_add_u32 v13, v8, v7")
    a("v_add_u32 v13, 0x10000, v13")
    for i in range(48):
        a(f"v_mov_b32 v{ACC+i}, 0")
    a("s_cmp_eq_u32 s59, 0")
    a("s_cbranch_scc1 K1_COMPUTE")
    for i in range(124, 132):
        a(f"v_mov_b32 v{i}, 0")
    for i in range(132, 136):
        a(f"v_mov_b32 v{i}, 0x3f803f80")
    a("s_mul_i32 s60, s21, 3072")
    a("v_add_u32 v13, s60, v13")
    a("s_mov_b32 s50, 0")
    a.lab("K1_SLOOP")
    a("s_and_b32 s51, s50, 3")
    a("s_lshl_b32 s52, s51, 14")
    a("s_mul_i32 s53, s51, 12288")
    for sp in range(4):
        a(f"v_add_u32 v{136+sp}, s52, v{120+sp}")
    a("v_add_u32 v14, s53, v13")
    a("s_barrier")
    for sp in range(4):
        a(f"ds_read_b128 {vr(32+4*sp,4)}, v{136+sp}")
    for j in range(3):
        for u in range(2):
            a(f"ds_read_b64_tr_b16 {vr(48+4*j+2*u,2)}, v14 offset:{u*768+j*64}")
    for i in range(16):
        if (i & 3) == 0:
            a(f"s_waitcnt lgkmcnt({9-(i>>2)})")
        t = 140 + 2 * (i & 3)
        a(f"v_lshlrev_b32 v{t}, 16, v{32+i}")
        a(f"v_and_b32 v{t+1}, 0xffff0000, v{32+i}")
        a(f"v_add_f32 v{124+(i&1)}, v{124+(i&1)}, v{t}")
        a(f"v_add_f32 v{126+(i&1)}, v{126+(i&1)}, v{t+1}")
        a(f"v_fmac_f32 v{128+(i&1)}, v{t}, v{t}")
        a(f"v_fmac_f32 v{130+(i&1)}, v{t+1}, v{t+1}")
    a("s_waitcnt lgkmcnt(0)")
    for j in range(3):
        a(f"v_mfma_f32_32x32x16_bf16 {vr(ACC+16*j,16)}, v[132:135], {vr(48+4*j,4)}, {vr(ACC+16*j,16)}")
    a("s_add_u32 s50, s50, 1")
    a("s_cmp_lt_u32 s50, 8")
    a("s_cbranch_scc1 K1_SLOOP")
    a("v_add_f32 v16, v124, v125")
    a("v_add_f32 v17, v126, v127")
    a("v_add_f32 v18, v128, v129")
    a("v_add_f32 v19, v130, v131")
    a("v_add_f32 v16, v16, v17")
    a("v_add_f32 v18, v18, v19")
    xhalf_add(a, 16, 17)
    xhalf_add(a, 18, 19)
    a("v_mul_f32 v16, 0x3b000000, v16")
    a("v_mul_f32 v18, 0x3b000000, v18")
    a("v_fma_f32 v18, -v16, v16, v18")
    a("v_max_f32 v18, 0, v18")
    bf16_round_to_f32(a, 16, 16)
    bf16_round_to_f32(a, 18, 18)
    a(f"v_add_f32 v18, 0x{f32bits(1e-5):08x}, v18")
    bf16_round_to_f32(a, 18, 18)
    a("v_sqrt_f32 v18, v18")
    a.nop(1)
    bf16_round_to_f32(a, 18, 18)
    a("v_rcp_f32 v18, v18")
    a("v_lshlrev_b32 v7, 2, v3")
    a("v_add_u32 v9, s34, v7")
    a("ds_write_b32 v9, v18")
    a("ds_write_b32 v9, v16 offset:2048")
    a("s_mul_i32 s35, s21, 384")
    a("s_add_u32 s35, s35, 115200")
    a("v_add_u32 v8, s35, v7")
    for j in range(3):
        a(f"ds_write_b32 v8, v{ACC+16*j} offset:{128*j}")
    a("s_waitcnt lgkmcnt(0)")
    a("s_barrier")
    a("s_branch K1_END")
    a.lab("K1_COMPUTE")
    a("v_cmp_eq_u32 vcc, 0, v4")
    a("s_waitcnt lgkmcnt(0)")
    a.srd(24, 8, WS_SIZE)
    a("s_cmp_lt_u32 s3, 10")
    a("s_cbranch_scc1 K1_P0")
    a("s_cmp_eq_u32 s3, 10")
    a("s_cbranch_scc1 K1_P1")
    a("s_branch K1_P2")

    def reads(sp, buf):
        a(f"ds_read_b128 {vr(AFR+4*buf,4)}, v{124+sp}")
        for j in range(3):
            for u in range(2):
                a(f"ds_read_b64_tr_b16 {vr(BF+12*buf+4*j+2*u,2)}, v14 offset:{sp*3072+u*768+j*64}")

    for pi, pat in enumerate([("S", "S", "S"), ("S", "S", "N"), ("N", "N", "N")]):
        a.lab(f"K1_P{pi}")
        a("s_mov_b32 s50, 0")
        a.lab(f"K1_P{pi}_LOOP")
        a("s_and_b32 s51, s50, 3")
        a("s_lshl_b32 s52, s51, 14")
        a("s_mul_i32 s53, s51, 12288")
        for sp in range(4):
            a(f"v_add_u32 v{124+sp}, s52, v{120+sp}")
        a("v_add_u32 v14, s53, v13")
        a(";@TC 0")
        a("s_barrier")
        a(";@TC 1")
        reads(0, 0)
        for sp in range(4):
            if sp < 3:
                reads(sp + 1, (sp + 1) & 1)
                a("s_waitcnt lgkmcnt(7)")
            else:
                a("s_waitcnt lgkmcnt(0)")
            bb = BF + 12 * (sp & 1)
            af = AFR + 4 * (sp & 1)
            for j in range(3):
                xa = vr(af, 4)
                wb = vr(bb + 4 * j, 4)
                acc = vr(ACC + 16 * j, 16)
                if pat[j] == "S":
                    a(f"v_mfma_f32_32x32x16_bf16 {acc}, {wb}, {xa}, {acc}")
                else:
                    a(f"v_mfma_f32_32x32x16_bf16 {acc}, {xa}, {wb}, {acc}")
        a("s_add_u32 s50, s50, 1")
        a("s_cmp_lt_u32 s50, 8")
        a(f"s_cbranch_scc1 K1_P{pi}_LOOP")
        a(";@T 2")
        a("v_lshlrev_b32 v7, 2, v3")
        a("v_add_u32 v9, s34, v7")
        a("v_add_u32 v7, 115200, v7")
        a("s_barrier")
        for j in range(3):
            for w in range(4):
                a(f"ds_read_b32 v{128+4*j+w}, v7 offset:{384*w+128*j}")
        a("ds_read_b32 v18, v9")
        a("ds_read_b32 v16, v9 offset:2048")
        a("s_waitcnt lgkmcnt(0)")
        for j in range(3):
            a(f"v_add_f32 v{128+4*j}, v{128+4*j}, v{129+4*j}")
            a(f"v_add_f32 v{130+4*j}, v{130+4*j}, v{131+4*j}")
            a(f"v_add_f32 v{20+j}, v{128+4*j}, v{130+4*j}")
        a("v_sub_f32 v17, 0, v16")
        a("v_cvt_pk_bf16_f32 v24, v17, v17")
        a("v_cndmask_b32 v24, 0, v24, vcc")
        a("v_mov_b32 v25, 0")
        a("v_mov_b32 v26, 0")
        a("v_mov_b32 v27, 0")
        for j in range(3):
            bf16_round_to_f32(a, 56, 20 + j)
            a(f"v_sub_f32 v57, v{20+j}, v56")
            a("v_cvt_pk_bf16_f32 v28, v56, v57")
            a("v_cndmask_b32 v28, 0, v28, vcc")
            a("v_mov_b32 v29, 0")
            a("v_mov_b32 v30, 0")
            a("v_mov_b32 v31, 0")
            a.nop(2)
            acc = vr(ACC + 16 * j, 16)
            if pat[j] == "S":
                a(f"v_mfma_f32_32x32x16_bf16 {acc}, v[28:31], v[24:27], {acc}")
            else:
                a(f"v_mfma_f32_32x32x16_bf16 {acc}, v[24:27], v[28:31], {acc}")
            a.nop(4)
        a.nop(16)
        a(";@T 3")
        a("s_lshr_b32 s36, s22, 5")
        for j in range(3):
            acc = ACC + 16 * j
            a("s_mul_i32 s40, s3, 96")
            a(f"s_add_u32 s40, s40, {32*j}")
            a("s_lshr_b32 s41, s40, 9")
            a("s_and_b32 s42, s40, 511")
            a("s_lshr_b32 s42, s42, 4")
            if pat[j] == "S":
                a("s_cmp_eq_u32 s41, 0")
                a(f"s_cselect_b32 s43, 0x{f32bits(CSCALE):08x}, 1.0")
                a("v_mul_f32 v56, s43, v18")
                for i in range(16):
                    a(f"v_mul_f32 v{acc+i}, v{acc+i}, v56")
                a("s_lshl_b32 s44, s41, 21")
                a("s_lshl_b32 s45, s42, 16")
                a("s_add_u32 s44, s44, s45")
                a("s_lshl_b32 s45, s36, 10")
                a("s_add_u32 s44, s44, s45")
                a("s_add_u32 s45, s44, 0x10000")
                a("v_lshlrev_b32 v57, 9, v4")
                a("v_lshl_add_u32 v57, v3, 4, v57")
                for i in range(8):
                    a(f"v_cvt_pk_bf16_f32 v{32+i}, v{acc+2*i}, v{acc+2*i+1}")
                a("buffer_store_dwordx4 v[32:35], v57, s[24:27], s44 offen")
                a("buffer_store_dwordx4 v[36:39], v57, s[24:27], s45 offen")
                a("s_cmp_eq_u32 s41, 1")
                a(f"s_cbranch_scc0 K1_P{pi}_NK{j}")
                a(f"v_mul_f32 v58, v{acc}, v{acc}")
                a(f"v_mul_f32 v59, v{acc+8}, v{acc+8}")
                for i in range(1, 8):
                    a(f"v_fmac_f32 v58, v{acc+i}, v{acc+i}")
                    a(f"v_fmac_f32 v59, v{acc+8+i}, v{acc+8+i}")
                xhalf_add(a, 58, 60)
                xhalf_add(a, 59, 60)
                a("v_add_u32 v60, s22, v3")
                a("v_lshlrev_b32 v60, 2, v60")
                a("s_lshl_b32 s46, s42, 13")
                a(f"s_add_u32 s46, s46, 0x{WS_KN:x}")
                a("s_add_u32 s47, s46, 8192")
                a("buffer_store_dword v58, v60, s[24:27], s46 offen")
                a("buffer_store_dword v59, v60, s[24:27], s47 offen")
                a.lab(f"K1_P{pi}_NK{j}")
                a.nop(2)
            else:
                a("v_lshlrev_b32 v57, 4, v4")
                a("v_add_u32 v57, s34, v57")
                for jj in range(4):
                    a(f"ds_read_b128 {vr(40+4*jj,4)}, v57 offset:{32*jj}")
                a("s_waitcnt lgkmcnt(0)")
                for i in range(16):
                    a(f"v_mul_f32 v{acc+i}, v{acc+i}, v{40+i}")
                a("s_lshl_b32 s45, s42, 16")
                a(f"s_add_u32 s44, s45, 0x{WS_VF:x}")
                a("s_lshl_b32 s45, s36, 10")
                a("s_add_u32 s44, s44, s45")
                a("v_lshrrev_b32 v57, 4, v3")
                a("v_lshlrev_b32 v57, 16, v57")
                a("v_lshl_add_u32 v57, v4, 8, v57")
                a("v_and_b32 v58, 15, v3")
                a("v_lshl_add_u32 v57, v58, 4, v57")
                for i in range(8):
                    a(f"v_cvt_pk_bf16_f32 v{32+i}, v{acc+2*i}, v{acc+2*i+1}")
                a("buffer_store_dwordx4 v[32:35], v57, s[24:27], s44 offen")
                a("buffer_store_dwordx4 v[36:39], v57, s[24:27], s44 offen offset:512")
                a.nop(2)
        a("s_branch K1_END")
    a.lab("K1_END")
    a("s_endpgm")
    return name, 152


K2_LDS = 139328
def gen_k2(a):
    name = "k2_attn_kernel"
    kernel_head(a, name)
    a("s_cmp_ge_u32 s2, 256")
    a("s_cbranch_scc1 K2_END")
    a("s_load_dwordx2 s[8:9], s[0:1], 80")
    a("s_and_b32 s3, s2, 31")
    a("s_lshr_b32 s20, s2, 5")
    a("v_lshrrev_b32 v1, 6, v0")
    a("v_and_b32 v2, 63, v0")
    a.nop(1)
    a("v_readfirstlane_b32 s21, v1")
    a("v_and_b32 v3, 31, v2")
    a("v_lshrrev_b32 v4, 5, v2")
    a("s_lshl_b32 s22, s3, 16")
    a("v_lshlrev_b32 v5, 4, v2")
    QF = 8
    a("s_lshl_b32 s23, s20, 3")
    a("s_add_u32 s23, s23, s21")
    a("s_lshl_b32 s28, s23, 10")
    a("s_add_u32 s28, s28, s22")
    a("v_lshlrev_b32 v6, 9, v4")
    a("v_lshl_add_u32 v6, v3, 4, v6")
    a("s_lshl_b32 s33, s21, 10")
    a("s_lshl_b32 s29, s3, 13")
    a(f"s_add_u32 s29, s29, 0x{WS_KN:x}")
    a("s_add_u32 s29, s29, s33")
    a(f"s_add_u32 s31, s22, 0x{WS_KF:x}")
    a(f"s_add_u32 s32, s22, 0x{WS_VF:x}")
    a("s_add_u32 s31, s31, s33")
    a("s_add_u32 s32, s32, s33")
    a("s_waitcnt lgkmcnt(0)")
    a.srd(24, 8, WS_SIZE)
    KNV = 64

    def chunk_dma():
        a("s_add_u32 s34, s33, s44")
        a("s_mov_b32 m0, s34")
        a("s_add_u32 s35, s31, s44")
        a("buffer_load_dwordx4 v5, s[24:27], s35 offen lds")
        a("s_add_u32 s34, s34, 65536")
        a("s_mov_b32 m0, s34")
        a("s_add_u32 s35, s32, s44")
        a("buffer_load_dwordx4 v5, s[24:27], s35 offen lds")
    a("s_cmp_eq_u32 s21, 8")
    a("s_cbranch_scc1 K2_HELPER")
    a(f"buffer_load_dwordx4 {vr(KNV,4)}, v5, s[24:27], s29 offen")
    a(f"buffer_load_dwordx4 {vr(QF,4)}, v6, s[24:27], s28 offen")
    a("s_mov_b32 s44, 0")
    chunk_dma()
    a("s_mov_b32 s44, 8192")
    chunk_dma()
    a("v_lshlrev_b32 v7, 4, v0")
    a("v_add_u32 v7, 0x20000, v7")
    for i in range(4):
        a(f"v_mov_b32 v{24+i}, 0x3f803f80")
    a("ds_write_b128 v7, v[24:27]")
    a("v_and_b32 v17, 15, v3")
    a("v_lshlrev_b32 v15, 8, v4")
    a("v_lshl_add_u32 v15, v17, 4, v15")
    a("v_cmp_gt_u32 vcc, 16, v3")
    a("v_add_u32 v18, 0x10000, v15")
    a("v_add_u32 v19, 0x20000, v15")
    a("v_mov_b32 v16, 0x1000")
    a.nop(1)
    a("v_cndmask_b32 v21, v19, v18, vcc")
    a("v_cndmask_b32 v16, 0, v16, vcc")
    a("v_mov_b32 v20, v6")
    a(";@T 0")
    a("s_waitcnt vmcnt(5)")
    a(";@T 1")
    a(f"v_max3_f32 v17, v{KNV}, v{KNV+1}, v{KNV+2}")
    a(f"v_max_f32 v17, v17, v{KNV+3}")
    for sh in (8, 4, 2, 1):
        a.nop(2)
        a(f"v_max_f32_dpp v17, v17, v17 row_ror:{sh} row_mask:0xf bank_mask:0xf")
    a.nop(2)
    a("v_readlane_b32 s36, v17, 0")
    a("v_readlane_b32 s37, v17, 16")
    a("v_readlane_b32 s38, v17, 32")
    a("v_readlane_b32 s39, v17, 48")
    a.nop(2)
    a("v_mov_b32 v17, s36")
    a("v_max_f32 v17, s37, v17")
    a("v_max_f32 v17, s38, v17")
    a("v_max_f32 v17, s39, v17")
    a("s_lshl_b32 s36, s21, 2")
    a("s_add_u32 s36, s36, 139264")
    a("v_mov_b32 v18, s36")
    a("ds_write_b32 v18, v17")
    a("s_waitcnt vmcnt(4)")
    a(f"v_dot2_f32_bf16 v18, v{QF}, v{QF}, 0")
    for i in range(1, 4):
        a(f"v_dot2_f32_bf16 v18, v{QF+i}, v{QF+i}, v18")
    a.nop(3)
    xhalf_add(a, 18, 19)
    NEGM = 32
    S0 = 48
    S1 = 64
    OA = 80
    P = 96
    KB = 104
    VB = 112
    a("s_mov_b32 s40, 0")
    a("s_mov_b32 s42, 10")
    a("v_mov_b32 v19, 139264")
    a(";@T 2")
    a("s_waitcnt vmcnt(2) lgkmcnt(0)")
    a("s_barrier")
    a(";@T 3")
    a("ds_read_b128 v[24:27], v19")
    a("ds_read_b128 v[28:31], v19 offset:16")
    a("s_waitcnt lgkmcnt(0)")
    a("v_max3_f32 v17, v24, v25, v26")
    a("v_max3_f32 v17, v17, v27, v28")
    a("v_max3_f32 v17, v17, v29, v30")
    a("v_max_f32 v17, v17, v31")
    a("v_mul_f32 v17, v17, v18")
    a("v_sqrt_f32 v17, v17")
    a.nop(1)
    a("v_sub_f32 v17, 0, v17")
    a.lab("K2_MAIN")
    for i in range(16):
        a(f"v_mov_b32 v{NEGM+i}, v17")
    for i in range(16):
        a(f"v_mov_b32 v{OA+i}, 0")
    a("v_mov_b32 v14, v20")
    a("v_mov_b32 v15, v21")
    S = [S0, S1]
    a(f"ds_read_b128 {vr(KB,4)}, v14")
    a(f"ds_read_b128 {vr(KB+4,4)}, v14 offset:1024")
    a(f"ds_read_b128 {vr(VB,4)}, v15")
    a(f"ds_read_b128 {vr(VB+4,4)}, v15 offset:512")
    a("s_waitcnt lgkmcnt(3)")
    a(f"v_mfma_f32_32x32x16_bf16 {vr(S0,16)}, {vr(KB,4)}, {vr(QF,4)}, {vr(NEGM,16)}")
    a.nop(8)
    a("s_mov_b32 s41, 0")
    a.lab("K2_LOOP")
    a("s_cmp_lt_u32 s41, s42")
    a("s_cbranch_scc1 K2_HOOK")
    a.lab("K2_BODY")
    for u in range(4):
        cur = S[u & 1]
        nxt = S[(u + 1) & 1]
        kb_next = KB + 4 * ((u + 1) & 1)
        kb_free = KB + 4 * (u & 1)
        vb_cur = VB + 8 * (u & 1)
        vb_free = VB + 8 * ((u + 1) & 1)
        a("s_waitcnt lgkmcnt(2)")
        a(f"v_mfma_f32_32x32x16_bf16 {vr(nxt,16)}, {vr(kb_next,4)}, {vr(QF,4)}, {vr(NEGM,16)}")
        a(f"ds_read_b128 {vr(kb_free,4)}, v14 offset:{1024*(u+2)}")
        a(f"ds_read_b128 {vr(vb_free,4)}, v15 offset:{1024*(u+1)}")
        a(f"ds_read_b128 {vr(vb_free+4,4)}, v15 offset:{1024*(u+1)+512}")
        for i in range(8):
            a(f"v_exp_f32 v{cur+i}, v{cur+i}")
        a(f"v_exp_f32 v{cur+8}, v{cur+8}")
        for i in range(4):
            a(f"v_cvt_pk_bf16_f32 v{P+i}, v{cur+2*i}, v{cur+2*i+1}")
        a(f"v_exp_f32 v{cur+9}, v{cur+9}")
        a(f"v_exp_f32 v{cur+10}, v{cur+10}")
        a("s_waitcnt lgkmcnt(3)")
        a(f"v_mfma_f32_32x32x16_bf16 {vr(OA,16)}, {vr(vb_cur,4)}, {vr(P,4)}, {vr(OA,16)}")
        for i in range(11, 16):
            a(f"v_exp_f32 v{cur+i}, v{cur+i}")
        a.nop(1)
        for i in range(4, 8):
            a(f"v_cvt_pk_bf16_f32 v{P+i}, v{cur+2*i}, v{cur+2*i+1}")
        if u == 3:
            a("v_add_u32 v14, 0x1000, v14")
            a("v_add_u32 v15, v16, v15")
            a("s_add_u32 s41, s41, 1")
            a("s_cmp_lt_u32 s41, 16")
        else:
            a.nop(2)
        a(f"v_mfma_f32_32x32x16_bf16 {vr(OA,16)}, {vr(vb_cur+4,4)}, {vr(P+4,4)}, {vr(OA,16)}")
    a("s_cbranch_scc1 K2_LOOP")
    a(";@T 4")
    a("s_waitcnt lgkmcnt(0)")
    a.nop(16)
    a("s_cmp_lg_u32 s40, 0")
    a("s_cbranch_scc1 K2_EPI")
    a(f"v_mov_b32 v18, 0x{f32bits(2.0**-80):08x}")
    a(f"v_cmp_nge_f32 vcc, v{OA+8}, v18")
    a.nop(4)
    a("s_cbranch_vccz K2_EPI")
    a("s_mov_b32 s40, 1")
    a("s_mov_b32 s42, 0")
    a("v_mov_b32 v14, v20")
    a("v_mov_b32 v18, 0xff800000")
    a("s_mov_b32 s41, 0")
    a.lab("K2_MAXP")
    a(f"ds_read_b128 {vr(KB,4)}, v14")
    a("s_waitcnt lgkmcnt(0)")
    a(f"v_mfma_f32_32x32x16_bf16 {vr(S0,16)}, {vr(KB,4)}, {vr(QF,4)}, 0")
    a.nop(16)
    for i in range(0, 16, 2):
        a(f"v_max3_f32 v18, v18, v{S0+i}, v{S0+i+1}")
    a("v_add_u32 v14, 0x400, v14")
    a("s_add_u32 s41, s41, 1")
    a("s_cmp_lt_u32 s41, 64")
    a("s_cbranch_scc1 K2_MAXP")
    xhalf_add(a, 18, 19, "v_max_f32")
    a("v_sub_f32 v17, 0, v18")
    a("s_branch K2_MAIN")
    a.lab("K2_HOOK")
    a("s_cmp_eq_u32 s41, 1")
    a("s_cbranch_scc0 K2_H3")
    a("s_waitcnt vmcnt(0)")
    a("s_barrier")
    a("s_branch K2_BODY")
    a.lab("K2_H3")
    a("s_cmp_eq_u32 s41, 3")
    a("s_cbranch_scc1 K2_HB")
    a("s_cmp_eq_u32 s41, 9")
    a("s_cbranch_scc0 K2_BODY")
    a.lab("K2_HB")
    a("s_barrier")
    a("s_branch K2_BODY")
    a.lab("K2_HELPER")
    a("s_sub_u32 s31, s31, s33")
    a("s_sub_u32 s32, s32, s33")
    a("s_mov_b32 s44, 16384")
    a("s_mov_b32 s46, 0")
    a("s_barrier")
    a.lab("K2_HL")
    a("s_mov_b32 s33, 0")
    a.lab("K2_HL2")
    a("s_add_u32 s34, s33, s44")
    a("s_mov_b32 m0, s34")
    a("s_add_u32 s35, s31, s34")
    a("buffer_load_dwordx4 v5, s[24:27], s35 offen lds")
    a("s_add_u32 s35, s32, s34")
    a("s_add_u32 s34, s34, 65536")
    a("s_mov_b32 m0, s34")
    a("s_add_u32 s33, s33, 1024")
    a("buffer_load_dwordx4 v5, s[24:27], s35 offen lds")
    a("s_cmp_lt_u32 s33, 8192")
    a("s_cbranch_scc1 K2_HL2")
    a("s_add_u32 s44, s44, 8192")
    a("s_add_u32 s46, s46, 1")
    a("s_cmp_eq_u32 s46, 1")
    a("s_cbranch_scc0 K2_HL3")
    a("s_barrier")
    a.lab("K2_HL3")
    a("s_cmp_lt_u32 s46, 6")
    a("s_cbranch_scc1 K2_HL")
    a("s_load_dwordx2 s[4:5], s[0:1], 16")
    a("s_load_dwordx4 s[12:15], s[0:1], 40")
    a("s_load_dwordx2 s[6:7], s[0:1], 56")
    a("s_waitcnt vmcnt(48)")
    a("s_barrier")
    a("s_waitcnt vmcnt(0) lgkmcnt(0)")
    a("s_barrier")
    a.srd(48, 4, 512 * 512 * 2)
    a.srd(52, 12, 512 * 1792 * 2)
    a.srd(56, 14, 512 * 1792 * 2)
    a.srd(60, 6, 1792 * 512 * 2)
    a("s_lshl_b32 s36, s2, 11")
    for i in range(2):
        a(f"buffer_load_dwordx4 {vr(32+4*i,4)}, v5, s[48:51], s36 offen offset:{1024*i}")
    a("s_mul_i32 s36, s2, 7168")
    a("s_add_u32 s37, s36, 4096")
    for m in range(3):
        for i in range(7):
            a(f"buffer_load_dwordx4 {vr(40+28*m+4*i,4)}, v5, s[{52+4*m}:{55+4*m}], s{36 if i<4 else 37} offen offset:{1024*(i&3)}")
    a("s_waitcnt vmcnt(0)")
    a("s_branch K2_END")
    a.lab("K2_EPI")
    a(f"v_rcp_f32 v18, v{OA+8}")
    a.nop(1)
    for i in range(8):
        a(f"v_mul_f32 v{OA+i}, v{OA+i}, v18")
    for i in range(4):
        a(f"v_cvt_pk_bf16_f32 v{P+i}, v{OA+2*i}, v{OA+2*i+1}")
    a("s_lshl_b32 s45, s23, 5")
    a("v_add_u32 v19, s45, v3")
    a("v_lshlrev_b32 v19, 10, v19")
    a("v_lshl_add_u32 v19, v4, 3, v19")
    a("s_lshl_b32 s43, s3, 5")
    a(f"s_add_u32 s43, s43, 0x{WS_O:x}")
    a(f"buffer_store_dwordx2 {vr(P,2)}, v19, s[24:27], s43 offen")
    a(f"buffer_store_dwordx2 {vr(P+2,2)}, v19, s[24:27], s43 offen offset:16")
    a.lab("K2_END")
    a("s_endpgm")
    return name, 128


if __name__ == "__main__":
    from gen2 import gen_k3, gen_k4a, gen_k4b
    ref = open(f"cdna_kernels/{NAME}.s.ref").read().splitlines()
    head = []
    for ln in ref:
        if ln.startswith(";") and "@launch" not in ln:
            head.append(ln)
        elif not ln.startswith(";"):
            break
    a = A()
    ks = []
    launches = []
    ks.append(gen_k1(a)); launches.append((256, 768, K1_LDS))
    ks.append(gen_k2(a)); launches.append((256, 576, K2_LDS))
    ks.append(gen_k3(a)); launches.append((256, 256, 65536))
    ks.append(gen_k4a(a)); launches.append((184, 1024, 103424))
    ks.append(gen_k4b(a)); launches.append((16, 256, 1024))
    nk = int(sys.argv[1]) if len(sys.argv) > 1 else len(ks)
    out = "\n".join(head) + "\n"
    for (n, _), (g, b, lds) in list(zip(ks, launches))[:nk]:
        out += f"; @launch kernel={n} grid=({g},1,1) block=({b},1,1) lds={lds}\n"
    out += '.amdgcn_target "amdgcn-amd-amdhsa--gfx950"\n.text\n'
    out += a.text()
    out += '.section .rodata,"a"\n'
    for n, v in ks:
        out += kd(n, v)
    open(f"cdna_kernels/{NAME}.s", "w").write(out)
    print("wrote", len(out), "bytes")
```

```python
from gen import *

WS_PS = 0xC80000
WS_SW = 0xC98000
WS_YP = 0xCA0000
assert WS_YP + 224 * 4096 <= WS_SIZE


def row_ror_sum(a, regs):
    for sh in (8, 4, 2, 1):
        a.nop(2)
        for r in regs:
            a(f"v_add_f32_dpp v{r}, v{r}, v{r} row_ror:{sh} row_mask:0xf bank_mask:0xf")


def ln_consts(a, m, e, rc):
    a(f"v_mul_f32 v{m}, 0x3b000000, v{m}")
    a(f"v_mul_f32 v{e}, 0x3b000000, v{e}")
    a(f"v_fma_f32 v{e}, -v{m}, v{m}, v{e}")
    a(f"v_max_f32 v{e}, 0, v{e}")
    bf16_round_to_f32(a, m, m)
    bf16_round_to_f32(a, e, e)
    a(f"v_add_f32 v{e}, 0x{f32bits(1e-5):08x}, v{e}")
    bf16_round_to_f32(a, e, e)
    a(f"v_sqrt_f32 v{e}, v{e}")
    a.nop(1)
    bf16_round_to_f32(a, e, e)
    a(f"v_rcp_f32 v{rc}, v{e}")
    a.nop(1)


def ln_pair(a, hp, m, d, rc, T, lp):
    a(f"v_lshlrev_b32 v{T+7}, 16, v{hp}")
    a(f"v_and_b32 v{T+8}, 0xffff0000, v{hp}")
    a(f"v_sub_f32 v{T}, v{T+7}, v{m}")
    a(f"v_sub_f32 v{T+1}, v{T+8}, v{m}")
    a(f"v_cvt_pk_bf16_f32 v{T+2}, v{T}, v{T+1}")
    a(f"v_lshlrev_b32 v{T}, 16, v{T+2}")
    a(f"v_and_b32 v{T+1}, 0xffff0000, v{T+2}")
    a(f"v_mul_f32 v{T+3}, v{T}, v{rc}")
    a(f"v_mul_f32 v{T+4}, v{T+1}, v{rc}")
    a(f"v_fma_f32 v{T+5}, -v{T+3}, v{d}, v{T}")
    a(f"v_fma_f32 v{T+6}, -v{T+4}, v{d}, v{T+1}")
    a(f"v_fmac_f32 v{T+3}, v{T+5}, v{rc}")
    a(f"v_fmac_f32 v{T+4}, v{T+6}, v{rc}")
    a(f"v_cvt_pk_bf16_f32 v{lp}, v{T+3}, v{T+4}")
    a(f"v_lshlrev_b32 v{T}, 16, v{lp}")
    a(f"v_and_b32 v{T+1}, 0xffff0000, v{lp}")


def gen_k3(a):
    name = "k3_proj_kernel"
    kernel_head(a, name)
    a("s_cmp_ge_u32 s2, 256")
    a("s_cbranch_scc1 K3_END")
    a("s_load_dwordx2 s[4:5], s[0:1], 0")
    a("s_load_dwordx2 s[6:7], s[0:1], 16")
    a("s_load_dwordx2 s[8:9], s[0:1], 80")
    a("s_load_dwordx2 s[44:45], s[0:1], 32")
    a("v_lshrrev_b32 v1, 6, v0")
    a("v_and_b32 v2, 63, v0")
    a.nop(1)
    a("v_readfirstlane_b32 s21, v1")
    a("v_and_b32 v3, 15, v2")
    a("v_lshrrev_b32 v4, 4, v2")
    a("s_and_b32 s3, s2, 3")
    a("s_lshr_b32 s20, s2, 2")
    a("s_lshl_b32 s22, s20, 5")
    a("s_lshl_b32 s23, s3, 8")
    AF = 32
    BR = 64
    FR = 128
    ACC = 160
    XR = 224
    WR = 232
    a("v_lshlrev_b32 v5, 13, v4")
    a("v_lshl_add_u32 v5, v3, 4, v5")
    a("v_add_u32 v5, s23, v5")
    a("v_add_u32 v6, 0x1000, v5")
    a("s_lshl_b32 s34, s21, 17")
    a("v_add_u32 v7, s22, v3")
    a("v_lshlrev_b32 v7, 10, v7")
    a("v_lshl_add_u32 v7, v4, 4, v7")
    a("s_lshl_b32 s35, s21, 8")
    a(f"s_add_u32 s35, s35, 0x{WS_O:x}")
    a("s_add_u32 s36, s35, 16384")
    a("s_lshr_b32 s37, s21, 1")
    a("s_lshl_b32 s37, s37, 4")
    a("s_and_b32 s38, s21, 1")
    a("s_lshl_b32 s38, s38, 1")
    a("s_add_u32 s37, s37, s38")
    a("s_add_u32 s37, s37, s22")
    a("v_lshl_add_u32 v10, v4, 2, s37")
    a("v_lshlrev_b32 v8, 10, v10")
    a("v_lshl_add_u32 v8, v3, 4, v8")
    a("v_add_u32 v8, s23, v8")
    a("v_lshlrev_b32 v9, 4, v3")
    a("v_add_u32 v9, s23, v9")
    a("s_waitcnt lgkmcnt(0)")
    a.srd(12, 4, 2048 * 512 * 2)
    a.srd(16, 6, 512 * 512 * 2)
    a.srd(24, 8, WS_SIZE)
    a.srd(48, 44, 1024)

    def bload(s, buf):
        a(f"s_add_u32 s39, s34, {s*32768}")
        for r in range(8):
            base = 5 if r < 4 else 6
            a(f"buffer_load_dwordx4 {vr(BR+32*buf+4*r,4)}, v{base}, s[16:19], s39 offen offset:{(r&3)*1024}")
    bload(0, 0)
    for rt in range(2):
        for s in range(4):
            a(f"buffer_load_dwordx4 {vr(AF+16*rt+4*s,4)}, v7, s[24:27], s{35+rt} offen offset:{64*s}")
    bload(1, 1)
    for i in range(2):
        a(f"buffer_load_dwordx4 {vr(XR+4*i,4)}, v8, s[12:15], 0 offen offset:{1024*i}")
    a(f"buffer_load_dwordx4 {vr(WR,4)}, v9, s[48:51], 0 offen")
    for i in range(64):
        a(f"v_mov_b32 v{ACC+i}, 0")
    a("s_mov_b32 s40, 0x05040100")
    a("s_mov_b32 s41, 0x07060302")
    a(";@T 0")
    waits = {0: 11, 1: 11, 2: 8, 3: 0}
    for s in range(4):
        a(f"s_waitcnt vmcnt({waits[s]})")
        if s == 0:
            a(";@T 1")
        bb = BR + 32 * (s & 1)
        for j in range(8):
            sel = "s40" if (j & 1) == 0 else "s41"
            for p in range(4):
                a(f"v_perm_b32 v{FR+4*j+p}, v{bb+4*(2*p+1)+(j>>1)}, v{bb+4*(2*p)+(j>>1)}, {sel}")
        if s + 2 < 4:
            bload(s + 2, s & 1)
        else:
            a.nop(1)
        for j in range(8):
            for rt in range(2):
                acc = vr(ACC + 32 * rt + 4 * j, 4)
                a(f"v_mfma_f32_16x16x32_bf16 {acc}, {vr(AF+16*rt+4*s,4)}, {vr(FR+4*j,4)}, {acc}")
    a(";@T 2")
    a.nop(10)
    a("v_lshlrev_b32 v11, 3, v2")
    a("s_lshl_b32 s39, s21, 12")
    a("v_add_u32 v12, s39, v11")
    for dest in range(4):
        rt, ip = dest >> 1, dest & 1
        for j in range(8):
            a(f"ds_write_b64 v12, {vr(ACC+32*rt+4*j+2*ip,2)} offset:{dest*16384+j*512}")
    a("s_waitcnt lgkmcnt(0)")
    a("s_barrier")
    a("s_lshl_b32 s39, s21, 14")
    a("v_add_u32 v12, s39, v11")
    RD = 64
    for src in range(4):
        for j in range(8):
            a(f"ds_read_b64 {vr(RD+16*src+2*j,2)}, v12 offset:{src*4096+j*512}")
    a("s_waitcnt lgkmcnt(0)")
    for k in range(16):
        a(f"v_add_f32 v{RD+k}, v{RD+k}, v{RD+16+k}")
        a(f"v_add_f32 v{RD+32+k}, v{RD+32+k}, v{RD+48+k}")
        a(f"v_add_f32 v{RD+k}, v{RD+k}, v{RD+32+k}")
    a(";@T 3")
    T = 128
    HP = 144
    for jp in range(4):
        a(f"v_lshlrev_b32 v{160+2*jp}, 16, v{WR+jp}")
        a(f"v_and_b32 v{161+2*jp}, 0xffff0000, v{WR+jp}")
    for ii in range(2):
        for k in range(3):
            a(f"v_mov_b32 v{16+3*ii+k}, 0")
        for jp in range(4):
            a(f"v_cvt_pk_bf16_f32 v{T}, v{RD+2*(2*jp)+ii}, v{RD+2*(2*jp+1)+ii}")
            a(f"v_lshlrev_b32 v{T+1}, 16, v{T}")
            a(f"v_and_b32 v{T+2}, 0xffff0000, v{T}")
            a(f"v_lshlrev_b32 v{T+3}, 16, v{XR+4*ii+jp}")
            a(f"v_and_b32 v{T+4}, 0xffff0000, v{XR+4*ii+jp}")
            a(f"v_add_f32 v{T+1}, v{T+1}, v{T+3}")
            a(f"v_add_f32 v{T+2}, v{T+2}, v{T+4}")
            a(f"v_cvt_pk_bf16_f32 v{HP+4*ii+jp}, v{T+1}, v{T+2}")
            a(f"v_lshlrev_b32 v{T+1}, 16, v{HP+4*ii+jp}")
            a(f"v_and_b32 v{T+2}, 0xffff0000, v{HP+4*ii+jp}")
            s_, q_, d_ = 16 + 3 * ii, 17 + 3 * ii, 18 + 3 * ii
            a(f"v_add_f32 v{s_}, v{s_}, v{T+1}")
            a(f"v_fmac_f32 v{q_}, v{T+1}, v{T+1}")
            a(f"v_fmac_f32 v{d_}, v{T+1}, v{160+2*jp}")
            a(f"v_add_f32 v{s_}, v{s_}, v{T+2}")
            a(f"v_fmac_f32 v{q_}, v{T+2}, v{T+2}")
            a(f"v_fmac_f32 v{d_}, v{T+2}, v{161+2*jp}")
    a(f"s_mov_b32 s38, 0x{WS_H:x}")
    for ii in range(2):
        a(f"buffer_store_dwordx4 {vr(HP+4*ii,4)}, v8, s[24:27], s38 offen offset:{1024*ii}")
    row_ror_sum(a, list(range(16, 22)))
    a("v_and_b32 v13, 7, v10")
    a("v_mul_u32_u24 v13, 0x3000, v13")
    a("v_lshrrev_b32 v14, 3, v10")
    a("v_lshl_add_u32 v13, v14, 4, v13")
    a("s_lshl_b32 s39, s3, 2")
    a(f"s_add_u32 s39, s39, 0x{WS_PS:x}")
    for ii in range(2):
        for k in range(3):
            a(f"s_add_u32 s38, s39, {(3*ii+k)*4096}")
            a(f"buffer_store_dword v{16+3*ii+k}, v13, s[24:27], s38 offen")
    a("s_cmp_lg_u32 s20, 0")
    a("s_cbranch_scc1 K3_END")
    a("v_add_f32 v30, v160, v161")
    for i in range(2, 8):
        a(f"v_add_f32 v30, v30, v{160+i}")
    row_ror_sum(a, [30])
    a("v_mov_b32 v31, 0")
    a("s_lshl_b32 s39, s3, 2")
    a(f"s_add_u32 s39, s39, 0x{WS_SW:x}")
    a("buffer_store_dword v30, v31, s[24:27], s39 offen")
    a.lab("K3_END")
    a("s_endpgm")
    return name, 236


def top2_merge(a, k1, k2, o1, o2, t):
    a(f"v_min_u32 v{t}, v{k1}, v{o1}")
    a(f"v_max_u32 v{k1}, v{k1}, v{o1}")
    a(f"v_max_u32 v{k2}, v{k2}, v{o2}")
    a(f"v_max_u32 v{k2}, v{k2}, v{t}")


def dpp_sum(a, regs, shifts):
    for sh in shifts:
        a.nop(2)
        for r in regs:
            a(f"v_add_f32_dpp v{r}, v{r}, v{r} row_ror:{sh} row_mask:0xf bank_mask:0xf")


def gen_k4a(a):
    name = "k4a_ffn1_kernel"
    kernel_head(a, name)
    a("s_cmp_ge_u32 s2, 184")
    a("s_cbranch_scc1 K4A_END")
    a("s_load_dwordx2 s[4:5], s[0:1], 40")
    a("s_load_dwordx2 s[6:7], s[0:1], 48")
    a("s_load_dwordx2 s[8:9], s[0:1], 80")
    a("s_load_dwordx2 s[10:11], s[0:1], 56")
    a("s_load_dwordx2 s[44:45], s[0:1], 32")
    a("s_load_dwordx2 s[46:47], s[0:1], 64")
    a("v_lshrrev_b32 v1, 6, v0")
    a("v_and_b32 v2, 63, v0")
    a.nop(1)
    a("v_readfirstlane_b32 s21, v1")
    a("v_lshlrev_b32 v5, 4, v2")
    a("s_waitcnt lgkmcnt(0)")
    a.srd(24, 8, WS_SIZE)
    a("s_cmp_lt_u32 s2, 56")
    a("s_cbranch_scc1 K4A_FFN")
    a.srd(28, 46, 2048 * 512 * 2)
    a("s_sub_u32 s22, s2, 56")
    a("s_lshl_b32 s22, s22, 4")
    a("s_add_u32 s22, s22, s21")
    a("s_lshl_b32 s23, s22, 10")
    a(f"s_add_u32 s52, s23, 0x{WS_H:x}")
    a("buffer_load_dwordx4 v[32:35], v5, s[24:27], s52 offen")
    a("s_and_b32 s53, s22, 7")
    a("s_mul_i32 s53, s53, 0x3000")
    a("s_lshr_b32 s34, s22, 3")
    a("s_lshl_b32 s34, s34, 4")
    a("s_add_u32 s53, s53, s34")
    a(f"s_add_u32 s53, s53, 0x{WS_PS:x}")
    a("s_add_u32 s32, s8, s53")
    a("s_addc_u32 s33, s9, 0")
    a("s_load_dwordx4 s[56:59], s[32:33], 0")
    a("s_load_dwordx4 s[60:63], s[32:33], 4096")
    a("s_waitcnt lgkmcnt(0)")
    for k in range(2):
        a(f"v_mov_b32 v{8+k}, s{56+4*k}")
        for cb in range(1, 4):
            a(f"v_add_f32 v{8+k}, s{56+4*k+cb}, v{8+k}")
    ln_consts(a, 8, 9, 10)
    a("s_waitcnt vmcnt(0)")
    T = 48
    for jp in range(4):
        ln_pair(a, 32 + jp, 8, 9, 10, T, T + 10)
        a(f"v_add_f32 v{T}, v{T}, v{T+7}")
        a(f"v_add_f32 v{T+1}, v{T+1}, v{T+8}")
        a(f"v_cvt_pk_bf16_f32 v{36+jp}, v{T}, v{T+1}")
    a("buffer_store_dwordx4 v[36:39], v5, s[28:31], s23 offen")
    a("s_branch K4A_END")
    a.lab("K4A_FFN")
    a.srd(12, 4, 512 * 1792 * 2)
    a.srd(16, 6, 512 * 1792 * 2)
    a.srd(28, 10, 1792 * 512 * 2)
    a.srd(48, 44, 1024)
    PSV = 32
    a("s_mov_b32 s39, 0xffff0000")
    a("s_cmp_ge_u32 s21, 4")
    a("s_cbranch_scc1 K4A_NOPS")
    a("v_lshlrev_b32 v20, 4, v0")
    a(f"s_mov_b32 s38, 0x{WS_PS:x}")
    for q in range(24):
        a(f"buffer_load_dwordx4 {vr(PSV+4*q,4)}, v20, s[24:27], s38 offen")
        a("s_add_u32 s38, s38, 4096")
    a.lab("K4A_NOPS")
    a(f"s_add_u32 s32, s8, 0x{WS_SW:x}")
    a("s_addc_u32 s33, s9, 0")
    a("s_load_dwordx4 s[56:59], s[32:33], 0")
    a("v_lshrrev_b32 v7, 2, v2")
    a("v_mul_u32_u24 v7, 0xe00, v7")
    a("v_and_b32 v3, 3, v2")
    a("v_lshl_add_u32 v7, v3, 4, v7")
    a("s_lshl_b32 s22, s2, 6")
    a("s_mul_i32 s23, s21, 114688")
    a("s_add_u32 s22, s22, s23")
    a("s_lshl_b32 s23, s21, 11")
    for i in range(2):
        for mi in range(2):
            a(f"s_add_u32 s36, s23, {mi*32768 + i*1024}")
            a("s_mov_b32 m0, s36")
            a(f"s_add_u32 s37, s22, {i*57344}")
            a(f"buffer_load_dwordx4 v7, s[{12+4*mi}:{15+4*mi}], s37 offen lds")
    a("s_lshl_b32 s22, s2, 15")
    a("s_add_u32 s22, s22, s23")
    for i in range(2):
        a(f"s_add_u32 s36, s23, {65536 + i*1024}")
        a("s_mov_b32 m0, s36")
        a(f"s_add_u32 s37, s22, {i*1024}")
        a("buffer_load_dwordx4 v5, s[28:31], s37 offen lds")
    a("v_and_b32 v4, 255, v0")
    a("v_lshlrev_b32 v6, 2, v4")
    a("buffer_load_dword v19, v6, s[48:51], 0 offen")
    a("v_mov_b32 v8, 0")
    a("v_mov_b32 v9, 0")
    a("v_mov_b32 v10, 100352")
    a("ds_write_b64 v10, v[8:9]")
    a("ds_write_b64 v10, v[8:9] offset:8")
    a(";@T 0")
    a("s_cmp_ge_u32 s21, 4")
    a("s_cbranch_scc1 K4A_RDONE")
    a("s_waitcnt vmcnt(7) lgkmcnt(0)")
    a(";@T 1")
    a("v_mov_b32 v8, s56")
    for q in range(1, 4):
        a(f"v_add_f32 v8, s{56+q}, v8")
    a("v_lshlrev_b32 v21, 3, v0")
    a("v_sub_u32 v21, 0x7ff, v21")
    a("v_mov_b32 v10, 0")
    a("v_mov_b32 v11, 0")
    for i in range(8):
        for k in range(3):
            b_ = PSV + 12 * i + 4 * k
            a(f"v_add_f32 v{b_}, v{b_}, v{b_+1}")
            a(f"v_add_f32 v{b_+2}, v{b_+2}, v{b_+3}")
            a(f"v_add_f32 v{b_}, v{b_}, v{b_+2}")
        m_, e_, d_ = PSV + 12 * i, PSV + 12 * i + 4, PSV + 12 * i + 8
        a(f"v_mul_f32 v{m_}, 0x3b000000, v{m_}")
        a(f"v_mul_f32 v{e_}, 0x3b000000, v{e_}")
        a(f"v_fma_f32 v{e_}, -v{m_}, v{m_}, v{e_}")
        a(f"v_add_f32 v{e_}, 0x{f32bits(1e-5):08x}, v{e_}")
        a(f"v_rsq_f32 v{e_}, v{e_}")
        a(f"v_fma_f32 v{d_}, -v{m_}, v8, v{d_}")
        a(f"v_subrev_u32 v{m_}, {i}, v21")
        a(f"v_mul_f32 v{d_}, v{d_}, v{e_}")
        a(f"v_cvt_pk_bf16_f32 v{d_}, v{d_}, v{d_}")
        a(f"v_lshlrev_b32 v{d_}, 16, v{d_}")
        a(f"v_ashrrev_i32 v{e_}, 31, v{d_}")
        a(f"v_or_b32 v{e_}, 0x80000000, v{e_}")
        a(f"v_xor_b32 v{d_}, v{d_}, v{e_}")
        a(f"v_and_or_b32 v{d_}, v{d_}, s39, v{m_}")
        a(f"v_min_u32 v22, v10, v{d_}")
        a(f"v_max_u32 v10, v10, v{d_}")
        a("v_max_u32 v11, v11, v22")
    for sh in (8, 4, 2, 1):
        a.nop(2)
        a(f"v_mov_b32_dpp v12, v10 row_ror:{sh} row_mask:0xf bank_mask:0xf")
        a(f"v_mov_b32_dpp v13, v11 row_ror:{sh} row_mask:0xf bank_mask:0xf")
        top2_merge(a, 10, 11, 12, 13, 22)
    a("v_lshrrev_b32 v22, 4, v0")
    a("v_lshlrev_b32 v22, 3, v22")
    a("v_add_u32 v22, 100416, v22")
    a("ds_write_b64 v22, v[10:11]")
    a.lab("K4A_RDONE")
    a("s_waitcnt lgkmcnt(0)")
    a("s_barrier")
    a("s_cmp_ge_u32 s21, 8")
    a("s_cbranch_scc1 K4A_XDONE")
    a("v_and_b32 v22, 15, v2")
    a("v_lshlrev_b32 v22, 3, v22")
    a("v_add_u32 v22, 100416, v22")
    a("ds_read_b64 v[10:11], v22")
    a("s_waitcnt lgkmcnt(0)")
    for sh in (8, 4, 2, 1):
        a.nop(2)
        a(f"v_mov_b32_dpp v12, v10 row_ror:{sh} row_mask:0xf bank_mask:0xf")
        a(f"v_mov_b32_dpp v13, v11 row_ror:{sh} row_mask:0xf bank_mask:0xf")
        top2_merge(a, 10, 11, 12, 13, 22)
    a.nop(1)
    a("v_readfirstlane_b32 s56, v10")
    a("v_readfirstlane_b32 s57, v11")
    a.nop(3)
    a("s_and_b32 s60, s56, 0x7ff")
    a("s_sub_u32 s60, 0x7ff, s60")
    a("s_and_b32 s61, s57, 0x7ff")
    a("s_sub_u32 s61, 0x7ff, s61")
    a(";@T 2")
    a("s_cmp_lt_u32 s21, 4")
    a("s_cselect_b32 s63, s60, s61")
    a("s_lshl_b32 s62, s63, 10")
    a(f"s_add_u32 s62, s62, 0x{WS_H:x}")
    a("buffer_load_dword v40, v6, s[24:27], s62 offen")
    a("s_and_b32 s62, s63, 7")
    a("s_mul_i32 s62, s62, 0x3000")
    a("s_lshr_b32 s34, s63, 3")
    a("s_lshl_b32 s34, s34, 4")
    a("s_add_u32 s62, s62, s34")
    a(f"s_add_u32 s62, s62, 0x{WS_PS:x}")
    a("s_add_u32 s32, s8, s62")
    a("s_addc_u32 s33, s9, 0")
    a("s_load_dwordx4 s[64:67], s[32:33], 0")
    a("s_load_dwordx4 s[68:71], s[32:33], 4096")
    a("v_lshlrev_b32 v17, 16, v19")
    a("v_and_b32 v18, 0xffff0000, v19")
    a("v_lshlrev_b32 v23, 2, v0")
    a("v_add_u32 v23, 98304, v23")
    a("s_waitcnt lgkmcnt(0)")
    for k in range(2):
        a(f"v_mov_b32 v{8+k}, s{64+4*k}")
        for cb in range(1, 4):
            a(f"v_add_f32 v{8+k}, s{64+4*k+cb}, v{8+k}")
    ln_consts(a, 8, 9, 10)
    a("s_waitcnt vmcnt(0)")
    ln_pair(a, 40, 8, 9, 10, 24, 41)
    a("ds_write_b32 v23, v41")
    a("v_mul_f32 v16, v24, v17")
    a("v_fmac_f32 v16, v25, v18")
    dpp_sum(a, [16], (8, 4, 2, 1))
    a("v_lshrrev_b32 v22, 4, v0")
    a("v_lshlrev_b32 v22, 2, v22")
    a("v_add_u32 v22, 103104, v22")
    a("ds_write_b32 v22, v16")
    a.lab("K4A_XDONE")
    a(";@T 3")
    a("s_waitcnt vmcnt(0) lgkmcnt(0)")
    a("s_barrier")
    a("v_and_b32 v3, 31, v2")
    a("v_lshrrev_b32 v4, 5, v2")
    a("v_cmp_gt_u32 vcc, 2, v3")
    a("v_and_b32 v7, 15, v2")
    a("v_lshrrev_b32 v8, 2, v7")
    a("v_and_b32 v9, 3, v7")
    a("v_lshl_add_u32 v8, v4, 3, v8")
    a("v_bfe_u32 v7, v2, 4, 1")
    a("v_lshlrev_b32 v7, 5, v7")
    a("v_lshl_add_u32 v7, v9, 3, v7")
    a("v_mov_b32 v11, 100352")
    a("s_cmp_ge_u32 s21, 8")
    a("s_cbranch_scc1 K4A_GDONE")
    a("s_and_b32 s36, s21, 1")
    a("s_lshr_b32 s37, s21, 1")
    a("s_lshl_b32 s38, s36, 15")
    a("s_lshl_b32 s39, s37, 13")
    a("s_add_u32 s38, s38, s39")
    a("v_lshl_add_u32 v12, v8, 6, v7")
    a("v_add_u32 v12, s38, v12")
    a("s_lshl_b32 s39, s37, 8")
    a("s_add_u32 s39, s39, 98304")
    a("v_lshlrev_b32 v13, 10, v3")
    a("v_lshl_add_u32 v13, v4, 4, v13")
    a("v_add_u32 v13, s39, v13")
    a("v_mov_b32 v14, 32")
    a("v_cndmask_b32 v13, v11, v13, vcc")
    a("v_cndmask_b32 v14, 0, v14, vcc")
    for i in range(16):
        a(f"v_mov_b32 v{64+i}, 0")
    for s in range(8):
        a(f"ds_read_b128 {vr(32+4*(s&1),4)}, v13")
        a(f"ds_read_b64_tr_b16 {vr(40+4*(s&1),2)}, v12 offset:{s*1024}")
        a(f"ds_read_b64_tr_b16 {vr(42+4*(s&1),2)}, v12 offset:{s*1024+256}")
        a("v_add_u32 v13, v14, v13")
        a("s_waitcnt lgkmcnt(0)")
        a(f"v_mfma_f32_32x32x16_bf16 v[64:79], {vr(32+4*(s&1),4)}, {vr(40+4*(s&1),4)}, v[64:79]")
    a.nop(16)
    a("s_lshl_b32 s38, s37, 9")
    a("s_lshl_b32 s39, s36, 8")
    a("s_add_u32 s38, s38, s39")
    a("s_add_u32 s38, s38, 100928")
    a("v_lshlrev_b32 v15, 2, v3")
    a("v_add_u32 v15, s38, v15")
    a("v_cmp_eq_u32 s[66:67], 0, v4")
    a("s_and_saveexec_b64 s[68:69], s[66:67]")
    a("ds_write_b32 v15, v64")
    a("ds_write_b32 v15, v65 offset:128")
    a("s_mov_b64 exec, s[68:69]")
    a.lab("K4A_GDONE")
    a("s_waitcnt lgkmcnt(0)")
    a("s_barrier")
    a("s_cmp_lg_u32 s21, 0")
    a("s_cbranch_scc1 K4A_ADONE")
    a("v_lshlrev_b32 v12, 2, v2")
    a("v_add_u32 v12, 100928, v12")
    for kq in range(4):
        a(f"ds_read_b32 v{32+kq}, v12 offset:{512*kq}")
        a(f"ds_read_b32 v{36+kq}, v12 offset:{512*kq+256}")
    a("s_waitcnt lgkmcnt(0)")
    for b in (32, 36):
        a(f"v_add_f32 v{b}, v{b}, v{b+1}")
        a(f"v_add_f32 v{b+2}, v{b+2}, v{b+3}")
        a(f"v_add_f32 v{b}, v{b}, v{b+2}")
    bf16_round_to_f32(a, 13, 32)
    bf16_round_to_f32(a, 15, 36)
    a(f"v_mul_f32 v14, 0x{f32bits(-math.log2(math.e)):08x}, v13")
    a("v_exp_f32 v14, v14")
    a.nop(1)
    a("v_add_f32 v14, 1.0, v14")
    a("v_rcp_f32 v16, v14")
    a.nop(1)
    a("v_mul_f32 v17, v13, v16")
    a("v_fma_f32 v18, -v17, v14, v13")
    a("v_fmac_f32 v17, v18, v16")
    bf16_round_to_f32(a, 17, 17)
    a("v_mul_f32 v17, v17, v15")
    a("v_cvt_pk_bf16_f32 v17, v17, v17")
    a("v_lshlrev_b32 v12, 1, v2")
    a("v_add_u32 v12, 102976, v12")
    a("ds_write_b16 v12, v17")
    a.lab("K4A_ADONE")
    a(";@T 4")
    a("s_waitcnt lgkmcnt(0)")
    a("s_barrier")
    a("s_lshl_b32 s38, s21, 6")
    a("s_add_u32 s38, s38, 65536")
    a("v_lshl_add_u32 v12, v8, 10, v7")
    a("v_add_u32 v12, s38, v12")
    a("v_lshlrev_b32 v13, 6, v3")
    a("v_lshl_add_u32 v13, v4, 4, v13")
    a("v_add_u32 v13, 102976, v13")
    a("v_add_u32 v14, 32, v13")
    a("v_cndmask_b32 v13, v11, v13, vcc")
    a("v_cndmask_b32 v14, v11, v14, vcc")
    for s in range(2):
        a(f"ds_read_b128 {vr(32+4*s,4)}, v{13+s}")
        a(f"ds_read_b64_tr_b16 {vr(40+4*s,2)}, v12 offset:{s*16384}")
        a(f"ds_read_b64_tr_b16 {vr(42+4*s,2)}, v12 offset:{s*16384+4096}")
    a("s_waitcnt lgkmcnt(0)")
    a("v_mfma_f32_32x32x16_bf16 v[64:79], v[32:35], v[40:43], 0")
    a("v_mfma_f32_32x32x16_bf16 v[64:79], v[36:39], v[44:47], v[64:79]")
    a("v_lshlrev_b32 v15, 2, v3")
    a("s_lshl_b32 s36, s2, 12")
    a("s_lshl_b32 s37, s21, 7")
    a("s_add_u32 s36, s36, s37")
    a(f"s_add_u32 s36, s36, 0x{WS_YP:x}")
    a("v_cmp_eq_u32 s[66:67], 0, v4")
    a.nop(16)
    a("s_and_saveexec_b64 s[68:69], s[66:67]")
    a("buffer_store_dword v64, v15, s[24:27], s36 offen")
    a("buffer_store_dword v65, v15, s[24:27], s36 offen offset:2048")
    a("s_mov_b64 exec, s[68:69]")
    a("s_cmp_lg_u32 s2, 0")
    a("s_cbranch_scc1 K4A_END")
    a("s_cmp_lg_u32 s21, 0")
    a("s_cbranch_scc1 K4A_END")
    a("v_lshlrev_b32 v9, 2, v2")
    a("v_add_u32 v9, 103104, v9")
    a("ds_read_b32 v16, v9")
    a("s_waitcnt lgkmcnt(0)")
    dpp_sum(a, [16], (8, 4, 2, 1))
    bf16_round_to_f32(a, 16, 16)
    a.nop(1)
    a("v_readlane_b32 s56, v16, 0")
    a("v_readlane_b32 s57, v16, 16")
    a.nop(2)
    a("v_mov_b32 v18, s56")
    a("v_mov_b32 v19, s57")
    a("v_mov_b32 v16, s60")
    a("v_mov_b32 v17, s61")
    a("v_mov_b32 v20, 0")
    a(f"s_mov_b32 s38, 0x{WS_SEL:x}")
    a("buffer_store_dwordx4 v[16:19], v20, s[24:27], s38 offen")
    a.lab("K4A_END")
    a("s_endpgm")
    return name, 128


def gen_k4b(a):
    name = "k4b_ffn2_kernel"
    kernel_head(a, name)
    a("s_cmp_ge_u32 s2, 16")
    a("s_cbranch_scc1 K4B_END")
    a("s_load_dwordx2 s[8:9], s[0:1], 80")
    a("s_load_dwordx2 s[10:11], s[0:1], 64")
    a("v_lshrrev_b32 v1, 6, v0")
    a("v_and_b32 v2, 63, v0")
    a.nop(1)
    a("v_readfirstlane_b32 s21, v1")
    a("s_waitcnt lgkmcnt(0)")
    a.srd(24, 8, WS_SIZE)
    a.srd(28, 10, 2048 * 512 * 2)
    a(f"s_add_u32 s32, s8, 0x{WS_SEL:x}")
    a("s_addc_u32 s33, s9, 0")
    a("s_load_dwordx4 s[60:63], s[32:33], 0")
    a("v_lshlrev_b32 v5, 2, v2")
    a("s_lshl_b32 s22, s2, 8")
    a("s_mul_i32 s23, s21, 57344")
    a("s_add_u32 s22, s22, s23")
    a(f"s_add_u32 s22, s22, 0x{WS_YP:x}")
    for p in range(14):
        a(f"buffer_load_dword v{32+p}, v5, s[24:27], s22 offen")
        a("s_add_u32 s22, s22, 4096")
    a("s_waitcnt lgkmcnt(0)")
    a("s_lshr_b32 s34, s2, 3")
    a("s_cmp_eq_u32 s34, 0")
    a("s_cselect_b32 s35, s60, s61")
    a("s_cselect_b32 s36, s62, s63")
    a("s_and_b32 s37, s2, 7")
    a("s_lshl_b32 s37, s37, 7")
    a("s_lshl_b32 s38, s35, 10")
    a("s_add_u32 s37, s37, s38")
    a("v_lshlrev_b32 v6, 1, v2")
    a(f"s_add_u32 s38, s37, 0x{WS_H:x}")
    a("buffer_load_ushort v20, v6, s[24:27], s38 offen")
    a("s_and_b32 s39, s35, 7")
    a("s_mul_i32 s39, s39, 0x3000")
    a("s_lshr_b32 s40, s35, 3")
    a("s_lshl_b32 s40, s40, 4")
    a("s_add_u32 s39, s39, s40")
    a(f"s_add_u32 s39, s39, 0x{WS_PS:x}")
    a("s_add_u32 s32, s8, s39")
    a("s_addc_u32 s33, s9, 0")
    a("s_load_dwordx4 s[64:67], s[32:33], 0")
    a("s_load_dwordx4 s[68:71], s[32:33], 4096")
    a("s_waitcnt vmcnt(1)")
    for p in range(1, 14):
        a(f"v_add_f32 v32, v32, v{32+p}")
    a("v_lshlrev_b32 v7, 2, v0")
    a("ds_write_b32 v7, v32")
    a("s_waitcnt lgkmcnt(0)")
    a("s_barrier")
    a("s_cmp_lg_u32 s21, 0")
    a("s_cbranch_scc1 K4B_END")
    for w in range(4):
        a(f"ds_read_b32 v{32+w}, v5 offset:{256*w}")
    for k in range(2):
        a(f"v_mov_b32 v{8+k}, s{64+4*k}")
        for cb in range(1, 4):
            a(f"v_add_f32 v{8+k}, s{64+4*k+cb}, v{8+k}")
    ln_consts(a, 8, 9, 10)
    a("v_mov_b32 v23, s36")
    a(f"v_mul_f32 v24, 0x{f32bits(-math.log2(math.e)):08x}, v23")
    a("v_exp_f32 v24, v24")
    a.nop(1)
    a("v_add_f32 v24, 1.0, v24")
    a("v_rcp_f32 v25, v24")
    a.nop(1)
    a("v_fma_f32 v26, -v25, v24, 1.0")
    a("v_fmac_f32 v25, v26, v25")
    bf16_round_to_f32(a, 25, 25)
    a("s_waitcnt vmcnt(0) lgkmcnt(0)")
    for st in (2, 1):
        for k in range(st):
            a(f"v_add_f32 v{32+k}, v{32+k}, v{32+st+k}")
    bf16_round_to_f32(a, 32, 32)
    a("v_mul_f32 v32, v32, v25")
    bf16_round_to_f32(a, 32, 32)
    ln_pair(a, 20, 8, 9, 10, 50, 60)
    a("v_add_f32 v50, v50, v32")
    bf16_round_to_f32(a, 50, 50)
    a("v_add_f32 v50, v50, v57")
    a("v_cvt_pk_bf16_f32 v50, v50, v50")
    a("buffer_store_short v50, v6, s[28:31], s37 offen")
    a.lab("K4B_END")
    a("s_endpgm")
    return name, 64
```

```python
import math, struct, sys, os
EXP=os.environ.get('EXP','')

NAME = "sequential_preLN__softmax_full_mha__moe_arch_mod__prompt"

WS_QF = 0x000000
WS_KF = 0x200000
WS_VF = 0x400000
WS_O = 0x600000
WS_H = 0x800000
WS_LN2 = 0xA00000
WS_KN = 0xC00000
WS_R = 0xC40000
WS_ACT = 0xC50000
WS_SEL = 0xC60000
WS_SIZE = 0xE00000

CSCALE = 0.25 * math.log2(math.e)


def f32bits(x):
    return struct.unpack("<I", struct.pack("<f", x))[0]


class A:
    def __init__(self):
        self.l = []

    def __call__(self, s):
        self.l.append("    " + s)

    def lab(self, s):
        self.l.append(s + ":")

    def raw(self, s):
        self.l.append(s)

    def nop(self, n):
        while n > 0:
            k = min(n, 16)
            self(f"s_nop {k-1}")
            n -= k

    def srd(self, d, base, size, off=0):
        if off:
            self(f"s_add_u32 s{d}, s{base}, 0x{off:x}")
            self(f"s_addc_u32 s{d+1}, s{base+1}, 0")
        else:
            self(f"s_mov_b32 s{d}, s{base}")
            self(f"s_mov_b32 s{d+1}, s{base+1}")
        self(f"s_mov_b32 s{d+2}, 0x{size:x}")
        self(f"s_mov_b32 s{d+3}, 0x00020000")

    def text(self):
        return "\n".join(self.l) + "\n"


def vr(a, n):
    return f"v[{a}:{a+n-1}]"


def kernel_head(a, name):
    a.raw(f".globl {name}")
    a.raw(".p2align 8")
    a.raw(f".type {name},@function")
    a.lab(name)


def kd(name, vgpr, sgpr=102):
    acc = (vgpr + 3) // 4 * 4
    return f""".p2align 6
.amdhsa_kernel {name}
  .amdhsa_next_free_vgpr {vgpr}
  .amdhsa_next_free_sgpr {sgpr}
  .amdhsa_accum_offset {acc}
  .amdhsa_group_segment_fixed_size 0
  .amdhsa_kernarg_size 88
  .amdhsa_user_sgpr_count 2
  .amdhsa_user_sgpr_kernarg_segment_ptr 1
  .amdhsa_system_sgpr_workgroup_id_x 1
.end_amdhsa_kernel
"""


def bf16_round_to_f32(a, dst, src):
    a(f"v_cvt_pk_bf16_f32 v{dst}, v{src}, v{src}")
    a(f"v_lshlrev_b32 v{dst}, 16, v{dst}")


def xhalf_add(a, v, t, op="v_add_f32"):
    a(f"v_mov_b32 v{t}, v{v}")
    a.nop(2)
    a(f"v_permlane32_swap_b32 v{v}, v{t}")
    a.nop(2)
    a(f"{op} v{v}, v{v}, v{t}")


K1_LDS = 117248
def gen_k1(a):
    name = "k1_qkv_kernel"
    kernel_head(a, name)
    a("s_cmp_ge_u32 s2, 256")
    a("s_cbranch_scc1 K1_END")
    a("s_load_dwordx2 s[4:5], s[0:1], 0")
    a("s_load_dwordx2 s[6:7], s[0:1], 8")
    a("s_load_dwordx2 s[8:9], s[0:1], 80")
    a("s_and_b32 s3, s2, 15")
    a("s_lshr_b32 s20, s2, 4")
    a("v_lshrrev_b32 v1, 6, v0")
    a("v_and_b32 v2, 63, v0")
    a.nop(1)
    a("v_readfirstlane_b32 s58, v1")
    a("v_and_b32 v3, 31, v2")
    a("v_lshrrev_b32 v4, 5, v2")
    a.nop(2)
    a("s_and_b32 s21, s58, 3")
    ACC = 64
    BF = 32
    AFR = 112
    a("s_lshl_b32 s22, s20, 7")
    a("s_lshl_b32 s23, s21, 5")
    a("s_add_u32 s22, s22, s23")
    a("s_lshl_b32 s29, s21, 12")
    a("s_lshl_b32 s34, s21, 7")
    a("s_add_u32 s34, s34, 114688")
    a("s_lshr_b32 s59, s58, 2")
    a("s_cmp_eq_u32 s59, 1")
    a("s_cbranch_scc0 K1_NOTDMA")
    a("v_lshrrev_b32 v7, 3, v2")
    a("v_lshlrev_b32 v7, 10, v7")
    a("v_and_b32 v8, 7, v2")
    a("v_lshrrev_b32 v9, 4, v2")
    a("v_xor_b32 v10, v8, v9")
    a("v_lshl_add_u32 v5, v10, 4, v7")
    a("v_xor_b32 v10, 4, v10")
    a("v_lshl_add_u32 v6, v10, 4, v7")
    for b in range(3):
        a(f"v_add_u32 v7, {64*b}, v2")
        a("v_mul_u32_u24 v8, 0xaaab, v7")
        a("v_lshrrev_b32 v8, 19, v8")
        a("v_mul_u32_u24 v9, 12, v8")
        a("v_sub_u32 v9, v7, v9")
        a("v_mul_u32_u24 v8, 0xc00, v8")
        a(f"v_lshl_add_u32 v{10+b}, v9, 4, v8")
    a("s_lshl_b32 s28, s22, 10")
    a("s_mul_i32 s30, s21, 49152")
    a("s_mul_i32 s31, s3, 192")
    a("s_add_u32 s30, s30, s31")
    a("s_mul_i32 s31, s21, 3072")
    a("s_add_u32 s31, s31, 65536")
    a("s_waitcnt lgkmcnt(0)")
    a.srd(12, 4, 2048 * 512 * 2)
    a.srd(16, 6, 512 * 1536 * 2)

    def dma_dyn():
        a("s_and_b32 s55, s54, 3")
        a("s_lshl_b32 s56, s55, 14")
        a("s_add_u32 s56, s56, s29")
        a("s_lshl_b32 s57, s54, 7")
        a("s_add_u32 s57, s57, s28")
        for i in range(4):
            a("s_mov_b32 m0, s56")
            a("s_add_u32 s56, s56, 1024")
            a(f"buffer_load_dwordx4 v{5+(i&1)}, s[12:15], s57 offen lds")
            a("s_add_u32 s57, s57, 8192")
        a("s_mul_i32 s56, s55, 12288")
        a("s_add_u32 s56, s56, s31")
        a("s_mul_i32 s57, s54, 196608")
        a("s_add_u32 s57, s57, s30")
        for b in range(3):
            a("s_mov_b32 m0, s56")
            a("s_add_u32 s56, s56, 1024")
            a(f"buffer_load_dwordx4 v{10+b}, s[16:19], s57 offen lds")
    a("s_mov_b32 s54, 0")
    a.lab("K1_HPRE")
    dma_dyn()
    a("s_add_u32 s54, s54, 1")
    a("s_cmp_lt_u32 s54, 3")
    a("s_cbranch_scc1 K1_HPRE")
    a("s_mov_b32 s50, 0")
    a.lab("K1_HLOOP")
    a("s_cmp_lt_u32 s50, 6")
    a("s_cbranch_scc1 K1_HW14")
    a("s_cmp_eq_u32 s50, 6")
    a("s_cbranch_scc1 K1_HW7")
    a("s_waitcnt vmcnt(0)")
    a.lab("K1_HW7")
    a("s_waitcnt vmcnt(7)")
    a.lab("K1_HW14")
    a("s_waitcnt vmcnt(14)")
    a("s_barrier")
    a("s_cmp_ge_u32 s50, 5")
    a("s_cbranch_scc1 K1_HNODMA")
    a("s_add_u32 s54, s50, 3")
    dma_dyn()
    a.lab("K1_HNODMA")
    a("s_add_u32 s50, s50, 1")
    a("s_cmp_lt_u32 s50, 8")
    a("s_cbranch_scc1 K1_HLOOP")
    if 'codepf' in EXP:
        a("s_lshl_b32 s60, s2, 12")
        a("s_lshl_b32 s61, s21, 10")
        a("s_add_u32 s62, s60, s61")
        a("s_cmp_ge_u32 s62, K_TEXT_END-k2_attn_kernel-1024")
        a("s_cbranch_scc1 K1_END")
        a("s_getpc_b64 s[60:61]")
        a.lab("K1_PC")
        a("s_add_u32 s60, s60, k2_attn_kernel-K1_PC")
        a("s_addc_u32 s61, s61, 0")
        a("s_add_u32 s60, s60, s62")
        a("s_addc_u32 s61, s61, 0")
        a("v_lshlrev_b32 v20, 4, v2")
        a("v_mov_b32 v21, s61")
        a("v_add_co_u32 v20, vcc, s60, v20")
        a.nop(2)
        a("v_addc_co_u32 v21, vcc, 0, v21, vcc")
        a("global_load_dwordx4 v[24:27], v[20:21], off")
        a("s_waitcnt vmcnt(0)")
    a("s_branch K1_END")
    a.lab("K1_NOTDMA")
    a("v_lshrrev_b32 v7, 1, v3")
    a("v_and_b32 v7, 7, v7")
    a("v_lshlrev_b32 v8, 7, v3")
    a("v_add_u32 v8, s29, v8")
    for sp in range(4):
        a(f"v_add_u32 v9, {2*sp}, v4")
        a("v_xor_b32 v9, v9, v7")
        a(f"v_lshl_add_u32 v{120+sp}, v9, 4, v8")
    a("v_and_b32 v7, 15, v2")
    a("v_lshrrev_b32 v8, 2, v7")
    a("v_and_b32 v9, 3, v7")
    a("v_lshl_add_u32 v8, v4, 3, v8")
    a("v_mul_u32_u24 v8, 192, v8")
    a("v_lshrrev_b32 v7, 4, v2")
    a("v_and_b32 v7, 1, v7")
    a("v_lshlrev_b32 v7, 5, v7")
    a("v_lshl_add_u32 v7, v9, 3, v7")
    a("v_add_u32 v13, v8, v7")
    a("v_add_u32 v13, 0x10000, v13")
    for i in range(48):
        a(f"v_mov_b32 v{ACC+i}, 0")
    a("s_cmp_eq_u32 s59, 0")
    a("s_cbranch_scc1 K1_COMPUTE")
    for i in range(124, 132):
        a(f"v_mov_b32 v{i}, 0")
    for i in range(132, 136):
        a(f"v_mov_b32 v{i}, 0x3f803f80")
    a("s_mul_i32 s60, s21, 3072")
    a("v_add_u32 v13, s60, v13")
    a("s_mov_b32 s50, 0")
    a.lab("K1_SLOOP")
    a("s_and_b32 s51, s50, 3")
    a("s_lshl_b32 s52, s51, 14")
    a("s_mul_i32 s53, s51, 12288")
    for sp in range(4):
        a(f"v_add_u32 v{136+sp}, s52, v{120+sp}")
    a("v_add_u32 v14, s53, v13")
    a("s_barrier")
    for sp in range(4):
        a(f"ds_read_b128 {vr(32+4*sp,4)}, v{136+sp}")
    for j in range(3):
        for u in range(2):
            a(f"ds_read_b64_tr_b16 {vr(48+4*j+2*u,2)}, v14 offset:{u*768+j*64}")
    for i in range(16):
        if (i & 3) == 0:
            a(f"s_waitcnt lgkmcnt({9-(i>>2)})")
        t = 140 + 2 * (i & 3)
        a(f"v_lshlrev_b32 v{t}, 16, v{32+i}")
        a(f"v_and_b32 v{t+1}, 0xffff0000, v{32+i}")
        a(f"v_add_f32 v{124+(i&1)}, v{124+(i&1)}, v{t}")
        a(f"v_add_f32 v{126+(i&1)}, v{126+(i&1)}, v{t+1}")
        a(f"v_fmac_f32 v{128+(i&1)}, v{t}, v{t}")
        a(f"v_fmac_f32 v{130+(i&1)}, v{t+1}, v{t+1}")
    a("s_waitcnt lgkmcnt(0)")
    for j in range(3):
        a(f"v_mfma_f32_32x32x16_bf16 {vr(ACC+16*j,16)}, v[132:135], {vr(48+4*j,4)}, {vr(ACC+16*j,16)}")
    a("s_add_u32 s50, s50, 1")
    a("s_cmp_lt_u32 s50, 8")
    a("s_cbranch_scc1 K1_SLOOP")
    a("v_add_f32 v16, v124, v125")
    a("v_add_f32 v17, v126, v127")
    a("v_add_f32 v18, v128, v129")
    a("v_add_f32 v19, v130, v131")
    a("v_add_f32 v16, v16, v17")
    a("v_add_f32 v18, v18, v19")
    xhalf_add(a, 16, 17)
    xhalf_add(a, 18, 19)
    a("v_mul_f32 v16, 0x3b000000, v16")
    a("v_mul_f32 v18, 0x3b000000, v18")
    a("v_fma_f32 v18, -v16, v16, v18")
    a("v_max_f32 v18, 0, v18")
    bf16_round_to_f32(a, 16, 16)
    bf16_round_to_f32(a, 18, 18)
    a(f"v_add_f32 v18, 0x{f32bits(1e-5):08x}, v18")
    bf16_round_to_f32(a, 18, 18)
    a("v_sqrt_f32 v18, v18")
    a.nop(1)
    bf16_round_to_f32(a, 18, 18)
    a("v_rcp_f32 v18, v18")
    a("v_lshlrev_b32 v7, 2, v3")
    a("v_add_u32 v9, s34, v7")
    a("ds_write_b32 v9, v18")
    a("ds_write_b32 v9, v16 offset:2048")
    a("s_mul_i32 s35, s21, 384")
    a("s_add_u32 s35, s35, 115200")
    a("v_add_u32 v8, s35, v7")
    for j in range(3):
        a(f"ds_write_b32 v8, v{ACC+16*j} offset:{128*j}")
    a("s_waitcnt lgkmcnt(0)")
    a("s_barrier")
    a("s_branch K1_END")
    a.lab("K1_COMPUTE")
    a("v_cmp_eq_u32 vcc, 0, v4")
    a("s_waitcnt lgkmcnt(0)")
    a.srd(24, 8, WS_SIZE)
    a("s_cmp_lt_u32 s3, 10")
    a("s_cbranch_scc1 K1_P0")
    a("s_cmp_eq_u32 s3, 10")
    a("s_cbranch_scc1 K1_P1")
    a("s_branch K1_P2")

    def reads(sp, buf):
        a(f"ds_read_b128 {vr(AFR+4*buf,4)}, v{124+sp}")
        for j in range(3):
            for u in range(2):
                a(f"ds_read_b64_tr_b16 {vr(BF+12*buf+4*j+2*u,2)}, v14 offset:{sp*3072+u*768+j*64}")

    for pi, pat in enumerate([("S", "S", "S"), ("S", "S", "N"), ("N", "N", "N")]):
        a.lab(f"K1_P{pi}")
        a("s_mov_b32 s50, 0")
        a.lab(f"K1_P{pi}_LOOP")
        a("s_and_b32 s51, s50, 3")
        a("s_lshl_b32 s52, s51, 14")
        a("s_mul_i32 s53, s51, 12288")
        for sp in range(4):
            a(f"v_add_u32 v{124+sp}, s52, v{120+sp}")
        a("v_add_u32 v14, s53, v13")
        a(";@TC 0")
        a("s_barrier")
        a(";@TC 1")
        reads(0, 0)
        for sp in range(4):
            if sp < 3:
                reads(sp + 1, (sp + 1) & 1)
                a("s_waitcnt lgkmcnt(7)")
            else:
                a("s_waitcnt lgkmcnt(0)")
            bb = BF + 12 * (sp & 1)
            af = AFR + 4 * (sp & 1)
            for j in range(3):
                xa = vr(af, 4)
                wb = vr(bb + 4 * j, 4)
                acc = vr(ACC + 16 * j, 16)
                if pat[j] == "S":
                    a(f"v_mfma_f32_32x32x16_bf16 {acc}, {wb}, {xa}, {acc}")
                else:
                    a(f"v_mfma_f32_32x32x16_bf16 {acc}, {xa}, {wb}, {acc}")
        a("s_add_u32 s50, s50, 1")
        a("s_cmp_lt_u32 s50, 8")
        a(f"s_cbranch_scc1 K1_P{pi}_LOOP")
        a(";@T 2")
        a("v_lshlrev_b32 v7, 2, v3")
        a("v_add_u32 v9, s34, v7")
        a("v_add_u32 v7, 115200, v7")
        a("s_barrier")
        for j in range(3):
            for w in range(4):
                a(f"ds_read_b32 v{128+4*j+w}, v7 offset:{384*w+128*j}")
        a("ds_read_b32 v18, v9")
        a("ds_read_b32 v16, v9 offset:2048")
        a("s_waitcnt lgkmcnt(0)")
        for j in range(3):
            a(f"v_add_f32 v{128+4*j}, v{128+4*j}, v{129+4*j}")
            a(f"v_add_f32 v{130+4*j}, v{130+4*j}, v{131+4*j}")
            a(f"v_add_f32 v{20+j}, v{128+4*j}, v{130+4*j}")
        a("v_sub_f32 v17, 0, v16")
        a("v_cvt_pk_bf16_f32 v24, v17, v17")
        a("v_cndmask_b32 v24, 0, v24, vcc")
        a("v_mov_b32 v25, 0")
        a("v_mov_b32 v26, 0")
        a("v_mov_b32 v27, 0")
        for j in range(3):
            bf16_round_to_f32(a, 56, 20 + j)
            a(f"v_sub_f32 v57, v{20+j}, v56")
            a("v_cvt_pk_bf16_f32 v28, v56, v57")
            a("v_cndmask_b32 v28, 0, v28, vcc")
            a("v_mov_b32 v29, 0")
            a("v_mov_b32 v30, 0")
            a("v_mov_b32 v31, 0")
            a.nop(2)
            acc = vr(ACC + 16 * j, 16)
            if pat[j] == "S":
                a(f"v_mfma_f32_32x32x16_bf16 {acc}, v[28:31], v[24:27], {acc}")
            else:
                a(f"v_mfma_f32_32x32x16_bf16 {acc}, v[24:27], v[28:31], {acc}")
            a.nop(4)
        a.nop(16)
        a(";@T 3")
        a("s_lshr_b32 s36, s22, 5")
        for j in range(3):
            acc = ACC + 16 * j
            a("s_mul_i32 s40, s3, 96")
            a(f"s_add_u32 s40, s40, {32*j}")
            a("s_lshr_b32 s41, s40, 9")
            a("s_and_b32 s42, s40, 511")
            a("s_lshr_b32 s42, s42, 4")
            if pat[j] == "S":
                a("s_cmp_eq_u32 s41, 0")
                a(f"s_cselect_b32 s43, 0x{f32bits(CSCALE):08x}, 1.0")
                a("v_mul_f32 v56, s43, v18")
                for i in range(16):
                    a(f"v_mul_f32 v{acc+i}, v{acc+i}, v56")
                a("s_lshl_b32 s44, s41, 21")
                a("s_lshl_b32 s45, s42, 16")
                a("s_add_u32 s44, s44, s45")
                a("s_lshl_b32 s45, s36, 10")
                a("s_add_u32 s44, s44, s45")
                a("s_add_u32 s45, s44, 0x10000")
                a("v_lshlrev_b32 v57, 9, v4")
                a("v_lshl_add_u32 v57, v3, 4, v57")
                for i in range(8):
                    a(f"v_cvt_pk_bf16_f32 v{32+i}, v{acc+2*i}, v{acc+2*i+1}")
                a("buffer_store_dwordx4 v[32:35], v57, s[24:27], s44 offen")
                a("buffer_store_dwordx4 v[36:39], v57, s[24:27], s45 offen")
                a("s_cmp_eq_u32 s41, 1")
                a(f"s_cbranch_scc0 K1_P{pi}_NK{j}")
                a(f"v_mul_f32 v58, v{acc}, v{acc}")
                a(f"v_mul_f32 v59, v{acc+8}, v{acc+8}")
                for i in range(1, 8):
                    a(f"v_fmac_f32 v58, v{acc+i}, v{acc+i}")
                    a(f"v_fmac_f32 v59, v{acc+8+i}, v{acc+8+i}")
                xhalf_add(a, 58, 60)
                xhalf_add(a, 59, 60)
                a("v_add_u32 v60, s22, v3")
                a("v_lshlrev_b32 v60, 2, v60")
                a("s_lshl_b32 s46, s42, 13")
                a(f"s_add_u32 s46, s46, 0x{WS_KN:x}")
                a("s_add_u32 s47, s46, 8192")
                a("buffer_store_dword v58, v60, s[24:27], s46 offen")
                a("buffer_store_dword v59, v60, s[24:27], s47 offen")
                a.lab(f"K1_P{pi}_NK{j}")
                a.nop(2)
            else:
                a("v_lshlrev_b32 v57, 4, v4")
                a("v_add_u32 v57, s34, v57")
                for jj in range(4):
                    a(f"ds_read_b128 {vr(40+4*jj,4)}, v57 offset:{32*jj}")
                a("s_waitcnt lgkmcnt(0)")
                for i in range(16):
                    a(f"v_mul_f32 v{acc+i}, v{acc+i}, v{40+i}")
                a("s_lshl_b32 s45, s42, 16")
                a(f"s_add_u32 s44, s45, 0x{WS_VF:x}")
                a("s_lshl_b32 s45, s36, 10")
                a("s_add_u32 s44, s44, s45")
                a("v_lshrrev_b32 v57, 4, v3")
                a("v_lshlrev_b32 v57, 16, v57")
                a("v_lshl_add_u32 v57, v4, 8, v57")
                a("v_and_b32 v58, 15, v3")
                a("v_lshl_add_u32 v57, v58, 4, v57")
                for i in range(8):
                    a(f"v_cvt_pk_bf16_f32 v{32+i}, v{acc+2*i}, v{acc+2*i+1}")
                a("buffer_store_dwordx4 v[32:35], v57, s[24:27], s44 offen")
                a("buffer_store_dwordx4 v[36:39], v57, s[24:27], s44 offen offset:512")
                a.nop(2)
        a("s_branch K1_END")
    a.lab("K1_END")
    a("s_endpgm")
    return name, 152


K2_LDS = 139328
def gen_k2(a):
    name = "k2_attn_kernel"
    kernel_head(a, name)
    a("s_cmp_ge_u32 s2, 256")
    a("s_cbranch_scc1 K2_END")
    a("s_load_dwordx2 s[8:9], s[0:1], 80")
    a("s_and_b32 s3, s2, 31")
    a("s_lshr_b32 s20, s2, 5")
    a("v_lshrrev_b32 v1, 6, v0")
    a("v_and_b32 v2, 63, v0")
    a.nop(1)
    a("v_readfirstlane_b32 s21, v1")
    a("v_and_b32 v3, 31, v2")
    a("v_lshrrev_b32 v4, 5, v2")
    a("s_lshl_b32 s22, s3, 16")
    a("v_lshlrev_b32 v5, 4, v2")
    QF = 8
    a("s_lshl_b32 s23, s20, 3")
    a("s_add_u32 s23, s23, s21")
    a("s_lshl_b32 s28, s23, 10")
    a("s_add_u32 s28, s28, s22")
    a("v_lshlrev_b32 v6, 9, v4")
    a("v_lshl_add_u32 v6, v3, 4, v6")
    a("s_lshl_b32 s33, s21, 10")
    a("s_lshl_b32 s29, s3, 13")
    a(f"s_add_u32 s29, s29, 0x{WS_KN:x}")
    a("s_add_u32 s29, s29, s33")
    a(f"s_add_u32 s31, s22, 0x{WS_KF:x}")
    a(f"s_add_u32 s32, s22, 0x{WS_VF:x}")
    a("s_add_u32 s31, s31, s33")
    a("s_add_u32 s32, s32, s33")
    a("s_waitcnt lgkmcnt(0)")
    a.srd(24, 8, WS_SIZE)
    KNV = 64

    def chunk_dma():
        a("s_add_u32 s34, s33, s44")
        a("s_mov_b32 m0, s34")
        a("s_add_u32 s35, s31, s44")
        a("buffer_load_dwordx4 v5, s[24:27], s35 offen lds")
        a("s_add_u32 s34, s34, 65536")
        a("s_mov_b32 m0, s34")
        a("s_add_u32 s35, s32, s44")
        a("buffer_load_dwordx4 v5, s[24:27], s35 offen lds")
    a("s_cmp_eq_u32 s21, 8")
    a("s_cbranch_scc1 K2_HELPER")
    a(f"buffer_load_dwordx4 {vr(KNV,4)}, v5, s[24:27], s29 offen")
    a(f"buffer_load_dwordx4 {vr(QF,4)}, v6, s[24:27], s28 offen")
    a("s_mov_b32 s44, 0")
    chunk_dma()
    a("s_mov_b32 s44, 8192")
    chunk_dma()
    a("v_lshlrev_b32 v7, 4, v0")
    a("v_add_u32 v7, 0x20000, v7")
    for i in range(4):
        a(f"v_mov_b32 v{24+i}, 0x3f803f80")
    a("ds_write_b128 v7, v[24:27]")
    a("v_and_b32 v17, 15, v3")
    a("v_lshlrev_b32 v15, 8, v4")
    a("v_lshl_add_u32 v15, v17, 4, v15")
    a("v_cmp_gt_u32 vcc, 16, v3")
    a("v_add_u32 v18, 0x10000, v15")
    a("v_add_u32 v19, 0x20000, v15")
    a("v_mov_b32 v16, 0x1000")
    a.nop(1)
    a("v_cndmask_b32 v21, v19, v18, vcc")
    a("v_cndmask_b32 v16, 0, v16, vcc")
    a("v_mov_b32 v20, v6")
    a(";@T 0")
    a("s_waitcnt vmcnt(5)")
    a(";@T 1")
    a(f"v_max3_f32 v17, v{KNV}, v{KNV+1}, v{KNV+2}")
    a(f"v_max_f32 v17, v17, v{KNV+3}")
    for sh in (8, 4, 2, 1):
        a.nop(2)
        a(f"v_max_f32_dpp v17, v17, v17 row_ror:{sh} row_mask:0xf bank_mask:0xf")
    a.nop(2)
    a("v_readlane_b32 s36, v17, 0")
    a("v_readlane_b32 s37, v17, 16")
    a("v_readlane_b32 s38, v17, 32")
    a("v_readlane_b32 s39, v17, 48")
    a.nop(2)
    a("v_mov_b32 v17, s36")
    a("v_max_f32 v17, s37, v17")
    a("v_max_f32 v17, s38, v17")
    a("v_max_f32 v17, s39, v17")
    a("s_lshl_b32 s36, s21, 2")
    a("s_add_u32 s36, s36, 139264")
    a("v_mov_b32 v18, s36")
    a("ds_write_b32 v18, v17")
    a("s_waitcnt vmcnt(4)")
    a(f"v_dot2_f32_bf16 v18, v{QF}, v{QF}, 0")
    for i in range(1, 4):
        a(f"v_dot2_f32_bf16 v18, v{QF+i}, v{QF+i}, v18")
    a.nop(3)
    xhalf_add(a, 18, 19)
    NEGM = 32
    S0 = 48
    S1 = 64
    OA = 80
    P = 96
    KB = 104
    VB = 112
    a("s_mov_b32 s40, 0")
    a("s_mov_b32 s42, 10")
    a("v_mov_b32 v19, 139264")
    a(";@T 2")
    a("s_waitcnt vmcnt(2) lgkmcnt(0)")
    a("s_barrier")
    a(";@T 3")
    a("ds_read_b128 v[24:27], v19")
    a("ds_read_b128 v[28:31], v19 offset:16")
    a("s_waitcnt lgkmcnt(0)")
    a("v_max3_f32 v17, v24, v25, v26")
    a("v_max3_f32 v17, v17, v27, v28")
    a("v_max3_f32 v17, v17, v29, v30")
    a("v_max_f32 v17, v17, v31")
    a("v_mul_f32 v17, v17, v18")
    a("v_sqrt_f32 v17, v17")
    a.nop(1)
    a("v_sub_f32 v17, 0, v17")
    if 'prio' in EXP:
        a("s_cmp_ge_u32 s21, 4")
        a("s_cbranch_scc0 K2_NOPRIO")
        a("s_setprio 1")
        a.lab("K2_NOPRIO")
    a.lab("K2_MAIN")
    for i in range(16):
        a(f"v_mov_b32 v{NEGM+i}, v17")
    for i in range(16):
        a(f"v_mov_b32 v{OA+i}, 0")
    a("v_mov_b32 v14, v20")
    a("v_mov_b32 v15, v21")
    S = [S0, S1]
    a(f"ds_read_b128 {vr(KB,4)}, v14")
    a(f"ds_read_b128 {vr(KB+4,4)}, v14 offset:1024")
    a(f"ds_read_b128 {vr(VB,4)}, v15")
    a(f"ds_read_b128 {vr(VB+4,4)}, v15 offset:512")
    a("s_waitcnt lgkmcnt(3)")
    a(f"v_mfma_f32_32x32x16_bf16 {vr(S0,16)}, {vr(KB,4)}, {vr(QF,4)}, {vr(NEGM,16)}")
    a.nop(8)
    a("s_mov_b32 s41, 0")
    a.lab("K2_LOOP")
    a("s_cmp_lt_u32 s41, s42")
    a("s_cbranch_scc1 K2_HOOK")
    a.lab("K2_BODY")
    for u in range(4):
        cur = S[u & 1]
        nxt = S[(u + 1) & 1]
        kb_next = KB + 4 * ((u + 1) & 1)
        kb_free = KB + 4 * (u & 1)
        vb_cur = VB + 8 * (u & 1)
        vb_free = VB + 8 * ((u + 1) & 1)
        a("s_waitcnt lgkmcnt(2)")
        a(f"v_mfma_f32_32x32x16_bf16 {vr(nxt,16)}, {vr(kb_next,4)}, {vr(QF,4)}, {vr(NEGM,16)}")
        a(f"ds_read_b128 {vr(kb_free,4)}, v14 offset:{1024*(u+2)}")
        if 'k2a' not in EXP:
            a(f"ds_read_b128 {vr(vb_free,4)}, v15 offset:{1024*(u+1)}")
            a(f"ds_read_b128 {vr(vb_free+4,4)}, v15 offset:{1024*(u+1)+512}")
        for i in range(8):
            a(f"v_exp_f32 v{cur+i}, v{cur+i}")
        a(f"v_exp_f32 v{cur+8}, v{cur+8}")
        for i in range(4):
            a(f"v_cvt_pk_bf16_f32 v{P+i}, v{cur+2*i}, v{cur+2*i+1}")
        a(f"v_exp_f32 v{cur+9}, v{cur+9}")
        a(f"v_exp_f32 v{cur+10}, v{cur+10}")
        a("s_waitcnt lgkmcnt(1)" if 'k2a' in EXP else "s_waitcnt lgkmcnt(3)")
        a(f"v_mfma_f32_32x32x16_bf16 {vr(OA,16)}, {vr(vb_cur,4)}, {vr(P,4)}, {vr(OA,16)}")
        for i in range(11, 16):
            a(f"v_exp_f32 v{cur+i}, v{cur+i}")
        if 'k2a' in EXP:
            a(f"ds_read_b128 {vr(vb_free,4)}, v15 offset:{1024*(u+1)}")
        else:
            a.nop(1)
        for i in range(4, 8):
            a(f"v_cvt_pk_bf16_f32 v{P+i}, v{cur+2*i}, v{cur+2*i+1}")
        if 'k2a' in EXP:
            a(f"ds_read_b128 {vr(vb_free+4,4)}, v15 offset:{1024*(u+1)+512}")
        if u == 3:
            a("v_add_u32 v14, 0x1000, v14")
            a("v_add_u32 v15, v16, v15")
            a("s_add_u32 s41, s41, 1")
            a("s_cmp_lt_u32 s41, 16")
        else:
            a.nop(1 if 'k2a' in EXP else 2)
        a(f"v_mfma_f32_32x32x16_bf16 {vr(OA,16)}, {vr(vb_cur+4,4)}, {vr(P+4,4)}, {vr(OA,16)}")
    a("s_cbranch_scc1 K2_LOOP")
    a(";@T 4")
    a("s_waitcnt lgkmcnt(0)")
    a.nop(16)
    a("s_cmp_lg_u32 s40, 0")
    a("s_cbranch_scc1 K2_EPI")
    a(f"v_mov_b32 v18, 0x{f32bits(2.0**-80):08x}")
    a(f"v_cmp_nge_f32 vcc, v{OA+8}, v18")
    a.nop(4)
    a("s_cbranch_vccz K2_EPI")
    a("s_mov_b32 s40, 1")
    a("s_mov_b32 s42, 0")
    a("v_mov_b32 v14, v20")
    a("v_mov_b32 v18, 0xff800000")
    a("s_mov_b32 s41, 0")
    a.lab("K2_MAXP")
    a(f"ds_read_b128 {vr(KB,4)}, v14")
    a("s_waitcnt lgkmcnt(0)")
    a(f"v_mfma_f32_32x32x16_bf16 {vr(S0,16)}, {vr(KB,4)}, {vr(QF,4)}, 0")
    a.nop(16)
    for i in range(0, 16, 2):
        a(f"v_max3_f32 v18, v18, v{S0+i}, v{S0+i+1}")
    a("v_add_u32 v14, 0x400, v14")
    a("s_add_u32 s41, s41, 1")
    a("s_cmp_lt_u32 s41, 64")
    a("s_cbranch_scc1 K2_MAXP")
    xhalf_add(a, 18, 19, "v_max_f32")
    a("v_sub_f32 v17, 0, v18")
    a("s_branch K2_MAIN")
    a.lab("K2_HOOK")
    a("s_cmp_eq_u32 s41, 1")
    a("s_cbranch_scc0 K2_H3")
    a("s_waitcnt vmcnt(0)")
    a("s_barrier")
    a("s_branch K2_BODY")
    a.lab("K2_H3")
    a("s_cmp_eq_u32 s41, 3")
    a("s_cbranch_scc1 K2_HB")
    a("s_cmp_eq_u32 s41, 9")
    a("s_cbranch_scc0 K2_BODY")
    a.lab("K2_HB")
    a("s_barrier")
    a("s_branch K2_BODY")
    a.lab("K2_HELPER")
    a("s_sub_u32 s31, s31, s33")
    a("s_sub_u32 s32, s32, s33")
    a("s_mov_b32 s44, 16384")
    a("s_mov_b32 s46, 0")
    a("s_barrier")
    a.lab("K2_HL")
    a("s_mov_b32 s33, 0")
    a.lab("K2_HL2")
    a("s_add_u32 s34, s33, s44")
    a("s_mov_b32 m0, s34")
    a("s_add_u32 s35, s31, s34")
    a("buffer_load_dwordx4 v5, s[24:27], s35 offen lds")
    a("s_add_u32 s35, s32, s34")
    a("s_add_u32 s34, s34, 65536")
    a("s_mov_b32 m0, s34")
    a("s_add_u32 s33, s33, 1024")
    a("buffer_load_dwordx4 v5, s[24:27], s35 offen lds")
    a("s_cmp_lt_u32 s33, 8192")
    a("s_cbranch_scc1 K2_HL2")
    a("s_add_u32 s44, s44, 8192")
    a("s_add_u32 s46, s46, 1")
    a("s_cmp_eq_u32 s46, 1")
    a("s_cbranch_scc0 K2_HL3")
    a("s_barrier")
    a.lab("K2_HL3")
    a("s_cmp_lt_u32 s46, 6")
    a("s_cbranch_scc1 K2_HL")
    a("s_load_dwordx2 s[4:5], s[0:1], 16")
    a("s_load_dwordx4 s[12:15], s[0:1], 40")
    a("s_load_dwordx2 s[6:7], s[0:1], 56")
    a("s_waitcnt vmcnt(48)")
    a("s_barrier")
    a("s_waitcnt vmcnt(0) lgkmcnt(0)")
    a("s_barrier")
    a.srd(48, 4, 512 * 512 * 2)
    a.srd(52, 12, 512 * 1792 * 2)
    a.srd(56, 14, 512 * 1792 * 2)
    a.srd(60, 6, 1792 * 512 * 2)
    a("s_lshl_b32 s36, s2, 11")
    for i in range(2):
        a(f"buffer_load_dwordx4 {vr(32+4*i,4)}, v5, s[48:51], s36 offen offset:{1024*i}")
    a("s_mul_i32 s36, s2, 7168")
    a("s_add_u32 s37, s36, 4096")
    for m in range(3):
        for i in range(7):
            a(f"buffer_load_dwordx4 {vr(40+28*m+4*i,4)}, v5, s[{52+4*m}:{55+4*m}], s{36 if i<4 else 37} offen offset:{1024*(i&3)}")
    a("s_waitcnt vmcnt(0)")
    a("s_branch K2_END")
    a.lab("K2_EPI")
    a(f"v_rcp_f32 v18, v{OA+8}")
    a.nop(1)
    for i in range(8):
        a(f"v_mul_f32 v{OA+i}, v{OA+i}, v18")
    for i in range(4):
        a(f"v_cvt_pk_bf16_f32 v{P+i}, v{OA+2*i}, v{OA+2*i+1}")
    a("s_lshl_b32 s45, s23, 5")
    a("v_add_u32 v19, s45, v3")
    a("v_lshlrev_b32 v19, 10, v19")
    a("v_lshl_add_u32 v19, v4, 3, v19")
    a("s_lshl_b32 s43, s3, 5")
    a(f"s_add_u32 s43, s43, 0x{WS_O:x}")
    a(f"buffer_store_dwordx2 {vr(P,2)}, v19, s[24:27], s43 offen")
    a(f"buffer_store_dwordx2 {vr(P+2,2)}, v19, s[24:27], s43 offen offset:16")
    a.lab("K2_END")
    a("s_endpgm")
    return name, 128


if __name__ == "__main__":
    from gen2 import gen_k3, gen_k4a, gen_k4b
    ref = open(f"cdna_kernels/{NAME}.s.ref").read().splitlines()
    head = []
    for ln in ref:
        if ln.startswith(";") and "@launch" not in ln:
            head.append(ln)
        elif not ln.startswith(";"):
            break
    a = A()
    ks = []
    launches = []
    ks.append(gen_k1(a)); launches.append((256, 768, K1_LDS))
    ks.append(gen_k2(a)); launches.append((256, 576, K2_LDS))
    ks.append(gen_k3(a)); launches.append((256, 256, 65536))
    ks.append(gen_k4a(a)); launches.append((184, 1024, 103424))
    ks.append(gen_k4b(a)); launches.append((16, 256, 1024))
    nk = int(sys.argv[1]) if len(sys.argv) > 1 else len(ks)
    out = "\n".join(head) + "\n"
    for (n, _), (g, b, lds) in list(zip(ks, launches))[:nk]:
        out += f"; @launch kernel={n} grid=({g},1,1) block=({b},1,1) lds={lds}\n"
    out += '.amdgcn_target "amdgcn-amd-amdhsa--gfx950"\n.text\n'
    out += a.text()
    out += "K_TEXT_END:\n    s_endpgm\n"
    out += '.section .rodata,"a"\n'
    for n, v in ks:
        out += kd(n, v)
    open(f"cdna_kernels/{NAME}.s", "w").write(out)
    print("wrote", len(out), "bytes")
```
